```python
import torch

def _softmax(x, axis=-1):
    return torch.softmax(x, dim=axis)

def _gelu(x):
    return torch.nn.functional.gelu(x, approximate='tanh')

def _silu(x):
    return torch.nn.functional.silu(x)

def _sigmoid(x):
    return torch.sigmoid(x)

def _layernorm(x, axis=-1, eps=1e-05):
    m = x.mean(dim=axis, keepdim=True)
    v = x.var(dim=axis, keepdim=True, unbiased=False)
    return (x - m) / torch.sqrt(v + eps)

def _scatter_add(tgt, idx, src, axis=0):
    return tgt.clone().index_add_(axis, idx, src)

def _segment_sum(src, seg, n):
    out = torch.zeros((n,) + src.shape[1:], dtype=src.dtype)
    return out.index_add_(0, seg, src)

def _pad(x, pw):
    flat = tuple((v for pair in reversed(pw) for v in pair))
    return torch.nn.functional.pad(x, flat)
kernel_name = 'recurrent_scan__sliding_block_cached__mixer_gmlp__prompt'

def setup_inputs():

    _w = lambda a: (lambda t: t.to(torch.bfloat16) if t.is_floating_point() else t)(torch.as_tensor(a))

    def _A_setup():
        B, Sq, D = (1, 2048, 512)
        Hq, Hkv, Sk, Dh = (32, 32, 2048, 128)
        assert Hq % Hkv == 0, (Hq, Hkv)
        return {'x': _w((lambda *s: torch.randn(*s, dtype=torch.bfloat16) * 0.05)(B, Sq, D)), 'k_cache': _w((lambda *s: torch.randn(*s, dtype=torch.bfloat16) * 0.8)(B, Hkv, Sk, Dh)), 'v_cache': _w((lambda *s: torch.randn(*s, dtype=torch.bfloat16) * 0.2)(B, Hkv, Sk, Dh)), 'wq': _w((lambda *s: torch.randn(*s, dtype=torch.bfloat16) * 0.8)(D, Hq * Dh) * D ** (-0.5)), 'wo': _w((lambda *s: torch.randn(*s, dtype=torch.bfloat16) * 0.2)(Hq * Dh, D) * (Hq * Dh) ** (-0.5))}
    _A_in = _A_setup()

    def _B_setup():
        B, S, D, F = (1, 2048, 512, 1376)
        Fh = F // 2
        return {'x': _w((lambda *s: torch.randn(*s, dtype=torch.bfloat16) * 0.05)(B, S, D)), 'w_in': _w((lambda *s: torch.randn(*s, dtype=torch.bfloat16) * 0.4)(D, 2 * Fh)), 'w_sp': _w(0.01 * (lambda *s: torch.randn(*s, dtype=torch.bfloat16) * 0.4)(S, S)), 'b_sp': _w(1.0 + 0.01 * (lambda *s: torch.randn(*s, dtype=torch.bfloat16) * 0.1)(S)), 'w_out': _w((lambda *s: torch.randn(*s, dtype=torch.bfloat16) * 0.1)(Fh, D))}
    _B_in = _B_setup()
    return {'A_x': _A_in['x'], 'A_k_cache': _A_in['k_cache'], 'A_v_cache': _A_in['v_cache'], 'A_wq': _A_in['wq'], 'A_wo': _A_in['wo'], 'B_x': _B_in['x'], 'B_w_in': _B_in['w_in'], 'B_w_sp': _B_in['w_sp'], 'B_b_sp': _B_in['b_sp'], 'B_w_out': _B_in['w_out']}

def reference(A_x, A_k_cache, A_v_cache, A_wq, A_wo, B_x, B_w_in, B_w_sp, B_b_sp, B_w_out):

    def _A_ref(x, k_cache, v_cache, wq, wo):
        B, Sq, D = x.shape
        Hq, Dh = (32, 128)
        Hkv, Sk = (k_cache.shape[1], k_cache.shape[2])
        W = min(4096, max(256, Sk // 4))
        rep = Hq // Hkv
        q = (lambda x, *d: x.permute(*d))((x @ wq).reshape(B, Sq, Hq, Dh), 0, 2, 1, 3)
        k = (lambda x, n, axis: torch.repeat_interleave(x, n, dim=axis))(k_cache[:, :, Sk - W:, :], rep, axis=1)
        v = (lambda x, n, axis: torch.repeat_interleave(x, n, dim=axis))(v_cache[:, :, Sk - W:, :], rep, axis=1)
        scores = torch.einsum('bhqd,bhkd->bhqk', q, k) * Dh ** (-0.5)
        p = _softmax(scores, axis=-1)
        o = torch.einsum('bhqk,bhkd->bhqd', p, v)
        return (lambda x, *d: x.permute(*d))(o, 0, 2, 1, 3).reshape(B, Sq, Hq * Dh) @ wo

    def _B_ref(x, w_in, w_sp, b_sp, w_out):
        B, S, D = x.shape
        F = w_in.shape[-1]
        Fh = F // 2
        z = _gelu(torch.einsum('bsd,df->bsf', x, w_in))
        z1 = z[..., :Fh].clone()
        z2 = _layernorm(z[..., Fh:], axis=-1)
        g = torch.einsum('ts,bsf->btf', w_sp, z2) + b_sp[None, :, None]
        return torch.einsum('bsf,fd->bsd', z1 * g, w_out)
    x = A_x
    xn = _layernorm(x, axis=-1)
    s = _A_ref(xn, A_k_cache, A_v_cache, A_wq, A_wo)
    g = _silu(_B_ref(xn, B_w_in, B_w_sp, B_b_sp, B_w_out))
    return x + s * g
```

```python
import re, heapq
from collections import defaultdict

class R:
    __slots__ = ("f", "b", "n")
    def __init__(self, f, b, n=1):
        self.f, self.b, self.n = f, b, n
    def __str__(self):
        if self.n == 1: return f"{self.f}{self.b}"
        return f"{self.f}[{self.b}:{self.b + self.n - 1}]"
    __repr__ = __str__
    def regs(self):
        return [f"{self.f}{self.b + i}" for i in range(self.n)]
    def __getitem__(self, i):
        if isinstance(i, slice):
            st = i.start or 0; en = i.stop if i.stop is not None else self.n
            assert 0 <= st < en <= self.n, (st, en, self.n)
            return R(self.f, self.b + st, en - st)
        assert 0 <= i < self.n, (i, self.n)
        return R(self.f, self.b + i, 1)
    def sub(self, st, n): return self[st:st + n]
def V(b, n=1): return R("v", b, n)
def A(b, n=1): return R("a", b, n)
def S(b, n=1): return R("s", b, n)
class Sp:
    def __init__(self, name, names=None):
        self.name = name; self.names = names or [name]
    def __str__(self): return self.name
    def regs(self): return list(self.names)
VCC = Sp("vcc"); EXEC = Sp("exec"); M0 = Sp("m0")

def regs_of(x):
    if isinstance(x, (R, Sp)): return x.regs()
    if isinstance(x, (list, tuple)):
        o = []
        for y in x: o += regs_of(y)
        return o
    if isinstance(x, str) and x.startswith("%"):
        return [x]
    return []

def fmt(x):
    if isinstance(x, float):
        import struct
        if x in (0.0, 0.5, 1.0, 2.0, 4.0, -0.5, -1.0, -2.0, -4.0): return repr(x) if x != 0.0 else "0"
        return hex(struct.unpack("<I", struct.pack("<f", x))[0])
    if isinstance(x, int):
        if -16 <= x <= 64: return str(x)
        return hex(x & 0xffffffff)
    return str(x)

TRANS = ("v_exp_f32", "v_log_f32", "v_rcp_f32", "v_rsq_f32", "v_sqrt_f32", "v_sin_f32", "v_cos_f32", "v_rcp_iflag_f32")

class Inst:
    __slots__ = ("text", "kind", "reads", "writes", "cost", "idx", "lat", "prio", "note", "passes", "srcc", "asap", "late", "op", "wide_store", "tag", "nwait", "srcab")
    def __init__(self, text, kind, reads=(), writes=(), cost=4, lat=4, op=None):
        self.text = text; self.kind = kind
        self.reads = list(dict.fromkeys(regs_of(list(reads)))); self.writes = list(dict.fromkeys(regs_of(list(writes))))
        self.cost = cost; self.lat = lat; self.prio = 0; self.note = ""; self.passes = 0; self.srcc = []; self.srcab = []
        self.asap = False; self.late = False; self.op = op or text.split()[0]; self.wide_store = False; self.tag = None; self.nwait = 1
    def __repr__(self): return self.text

LAT_DS = 140
LAT_VM = 1400

class Prog:
    def __init__(self):
        self.cur = []
        self.out = []
    def add(self, i):
        self.cur.append(i); return i
    def valu(self, op, dst, *srcs, mods="", xr=(), xw=(), rmw=False):
        ops = [dst] + list(srcs)
        text = f"{op} " + ", ".join(fmt(o) for o in ops) + (" " + mods if mods else "")
        base = re.sub(r"_(e32|e64|dpp|sdwa)$", "", op)
        reads = list(srcs) + list(xr); writes = [dst] + list(xw)
        if rmw or base in ("v_fmac_f32", "v_writelane_b32"): reads.append(dst)
        if base in ("v_permlane32_swap_b32", "v_permlane16_swap_b32"):
            reads.append(dst); writes += list(srcs)
        if base.startswith("v_cndmask") and len(srcs) == 2: reads.append(VCC)
        kind = "trans" if base in TRANS else "valu"
        i = Inst(text, kind, reads, writes, cost=8 if kind == "trans" else 4, lat=8 if kind == "trans" else 4, op=base)
        if "dpp" in op or "row_" in mods or "quad_perm" in mods: i.tag = "dpp"
        return self.add(i)
    def v(self, op, dst, *srcs, **k): return self.valu("v_" + op, dst, *srcs, **k)
    def vcmp(self, op, dst, a, b):
        return self.valu(op, dst, a, b)
    def salu(self, op, dst, *srcs, scc_w=None, scc_r=False):
        ops = ([dst] if dst is not None else []) + list(srcs)
        text = f"{op} " + ", ".join(fmt(o) for o in ops)
        noscc = ("s_mov_b32", "s_mov_b64", "s_movk_i32", "s_mul_i32", "s_mul_hi_u32", "s_cselect_b32", "s_cselect_b64", "s_getreg_b32", "s_setprio")
        if scc_w is None: scc_w = op not in noscc
        if op in ("s_addc_u32", "s_subb_u32", "s_cselect_b32", "s_cselect_b64"): scc_r = True
        reads = list(srcs) + (["%scc"] if scc_r else []); writes = ([dst] if dst is not None else []) + (["%scc"] if scc_w else [])
        return self.add(Inst(text.strip(), "salu", reads, writes, op=op))
    def s(self, op, dst, *srcs, **k): return self.salu("s_" + op, dst, *srcs, **k)
    def scmp(self, op, a, b): return self.salu(op, None, a, b, scc_w=True)
    def mfma(self, d, a, b, c, shape="32x32x16"):
        text = f"v_mfma_f32_{shape}_bf16 {d}, {a}, {b}, {fmt(c)}"
        passes = 8 if shape == "32x32x16" else 4
        i = Inst(text, "mfma", [a, b, c], [d], cost=8, lat=passes * 4 + 16, op="v_mfma")
        i.passes = passes; i.srcc = regs_of(c); i.srcab = regs_of([a, b])
        return self.add(i)
    def ds_read(self, op, dst, addr, offset=0, xr=(), lat=None):
        text = f"{op} {dst}, {addr}" + (f" offset:{offset}" if offset else "")
        assert 0 <= offset < 65536, offset
        return self.add(Inst(text, "ds_read", [addr] + list(xr), [dst], lat=lat or LAT_DS, op=op))
    def ds_write(self, op, addr, data, offset=0, xr=(), xw=()):
        text = f"{op} {addr}, {data}" + (f" offset:{offset}" if offset else "")
        assert 0 <= offset < 65536, offset
        cost = 4
        return self.add(Inst(text, "ds_write", [addr, data] + list(xr), list(xw), cost=cost, lat=64, op=op))
    def bload(self, op, dst, voff, srd, soff=0, offset=0, flags="", xr=(), xw=(), lat=None):
        assert 0 <= offset < 4096
        text = f"{op} {dst}, {voff}, {srd}, {fmt(soff)} offen" + (f" offset:{offset}" if offset else "") + (" " + flags if flags else "")
        i = Inst(text, "vmem_load", [voff, srd, soff] + list(xr), [dst] + list(xw), lat=lat or LAT_VM, op=op); i.asap = True
        return self.add(i)
    def dma(self, voff, srd, soff=0, offset=0, flags="", xr=(), xw=(), op="buffer_load_dwordx4", lat=None):
        assert 0 <= offset < 4096
        text = f"{op} {voff}, {srd}, {fmt(soff)} offen" + (f" offset:{offset}" if offset else "") + (" " + flags if flags else "") + " lds"
        i = Inst(text, "dma", [voff, srd, soff, M0] + list(xr), list(xw), lat=lat or LAT_VM, op=op); i.asap = True
        return self.add(i)
    def bstore(self, op, data, voff, srd, soff=0, offset=0, flags="", xr=(), xw=()):
        assert 0 <= offset < 4096
        text = f"{op} {data}, {voff}, {srd}, {fmt(soff)} offen" + (f" offset:{offset}" if offset else "") + (" " + flags if flags else "")
        i = Inst(text, "vmem_store", [data, voff, srd, soff] + list(xr), list(xw), lat=LAT_VM, op=op)
        i.wide_store = op.endswith("x3") or op.endswith("x4")
        i.srcab = regs_of(data)
        return self.add(i)
    def batomic(self, op, data, voff, srd, soff=0, flags="sc1", xr=(), xw=()):
        text = f"{op} {data}, {voff}, {srd}, {fmt(soff)} offen" + (" " + flags if flags else "")
        return self.add(Inst(text, "vmem_store", [data, voff, srd, soff] + list(xr), list(xw), lat=LAT_VM, op=op))
    def sload(self, op, dst, base, off):
        text = f"{op} {dst}, {base}, {fmt(off)}"
        return self.add(Inst(text, "smem", [base], [dst], lat=200, op=op))
    def barrier(self, xr=(), xw=()):
        i = Inst("s_barrier", "barrier", list(xr) + ["%bar"], list(xw) + ["%bar"], cost=20, lat=4); i.late = True
        return self.add(i)
    def raw(self, text, kind="salu", reads=(), writes=(), cost=4, lat=4):
        return self.add(Inst(text, kind, reads, writes, cost=cost, lat=lat))
    def branch(self, text, reads=(), writes=()):
        i = Inst(text, "branch", list(reads) + ["%br"], list(writes) + ["%br"]); return self.add(i)
    def nop(self, n):
        i = Inst(f"s_nop {n}", "nop", cost=4 * (n + 1)); i.nwait = n + 1
        return self.add(i)
    def flush(self, schedule=True, **kw):
        lst = self.cur; self.cur = []
        if schedule and lst: lst = schedule_block(lst, **kw)
        self.out += lst
    def label(self, name):
        self.flush(schedule=False)
        self.out.append(f"{name}:")
    def text(self, s):
        self.flush(schedule=False)
        self.out.append(s)

def is_v(r): return r[0] in "va" and r[1:].isdigit()
def is_s(r): return (r[0] == "s" and r[1:].isdigit()) or r in ("vcc",)
VALU_KINDS = ("valu", "trans")
def mfma_pad(p):
    return {2: 5, 4: 8, 8: 12, 16: 20}[p]

def hazard(p, c):
    need = 0
    pw = set(p.writes); pr = set(p.reads); cr = set(c.reads); cw = set(c.writes)
    pk, ck = p.kind, c.kind
    if pk == "mfma":
        ov_r = pw & cr; ov_w = pw & cw
        if ck == "mfma":
            if pw & set(c.srcab): need = max(need, mfma_pad(p.passes))
            oc = pw & set(c.srcc)
            if oc:
                if set(c.srcc) == pw and p.passes == c.passes: pass
                else: need = max(need, {2: 4, 4: 6, 8: 10, 16: 18}[p.passes])
            elif ov_w and not oc:
                need = max(need, mfma_pad(p.passes))
        elif ck in VALU_KINDS or ck in ("vmem_store", "vmem_load", "ds_read", "ds_write", "dma"):
            if ov_r or ov_w: need = max(need, mfma_pad(p.passes))
        if ck in VALU_KINDS and (set(p.srcc) & cw): need = max(need, {2: 1, 4: 3, 8: 7, 16: 15}[p.passes])
    if pk in VALU_KINDS:
        vw = {r for r in pw if is_v(r)}; sw = {r for r in pw if is_s(r)}
        if ck == "mfma" and (vw & cr): need = max(need, 2)
        if pk == "trans" and ck == "valu" and (vw & cr): need = max(need, 1)
        if ck in VALU_KINDS:
            if c.op in ("v_permlane32_swap_b32", "v_permlane16_swap_b32") and (vw & cr): need = max(need, 2)
            if c.tag == "dpp" and (vw & cr): need = max(need, 2)
            if c.op in ("v_readfirstlane_b32", "v_readlane_b32") and (vw & cr): need = max(need, 1)
            if sw & cr:
                need = max(need, 4 if c.op in ("v_readlane_b32", "v_writelane_b32") else 2)
        if ck in ("vmem_load", "vmem_store", "dma") and (sw & cr): need = max(need, 5)
        if ck in ("salu", "branch") and (sw & cr): need = max(need, 1)
        if "exec" in pw and ck == "mfma": need = max(need, 4)
    if pk == "salu":
        if "m0" in pw and ck == "dma": need = max(need, 1)
        if "exec" in pw and ck == "mfma": need = max(need, 1)
    if pk == "vmem_store" and p.wide_store:
        dv = set(p.srcab)
        if dv & cw: need = max(need, 2)
    return need
MAX_HAZ = 20

def build_dag(lst):
    n = len(lst)
    succ = [[] for _ in range(n)]; npred = [0] * n
    lastw = {}; readers = defaultdict(list)
    last_mfma = None
    edges = set()
    def edge(a, b, lat):
        if a == b: return
        succ[a].append((b, lat)); npred[b] += 1
    for i, ins in enumerate(lst):
        ins.idx = i
        for r in ins.reads:
            if r in lastw:
                p = lst[lastw[r]]
                lat = p.lat
                if p.kind == "mfma" and ins.kind == "mfma" and r in ins.srcc and set(ins.srcc) == set(p.writes): lat = p.passes * 4
                if p.kind in ("barrier", "branch", "label") : lat = 0
                if ins.kind in ("branch", "label") and p.kind == "mfma": lat = 0
                if r.startswith("%") and p.kind in ("salu", "valu"): lat = 4
                edge(lastw[r], i, lat)
        for r in ins.writes:
            if r in lastw:
                p = lst[lastw[r]]
                lat = p.lat if p.kind in ("ds_read", "vmem_load", "mfma", "smem", "dma", "vmem_store") else 0
                if p.kind == "mfma" and ins.kind == "mfma" and r in ins.srcc: lat = p.passes * 4
                if ins.kind in ("branch", "label") and p.kind == "mfma": lat = 0
                edge(lastw[r], i, lat)
            for q in readers[r]:
                edge(q, i, 0)
        for r in ins.reads: readers[r].append(i)
        for r in ins.writes:
            lastw[r] = i; readers[r] = []
        if ins.kind == "mfma":
            if last_mfma is not None: edge(last_mfma, i, lst[last_mfma].passes * 4)
            last_mfma = i
    return succ, npred

def schedule_block(lst, verbose=False, t0=0, asap_boost=1000000, lazy_margin=110, slack=0):
    n = len(lst)
    succ, npred = build_dag(lst)
    height = [0] * n
    for i in range(n - 1, -1, -1):
        h = lst[i].cost
        for (j, lat) in succ[i]:
            h = max(h, height[j] + max(lat, lst[i].cost if lst[i].kind != "mfma" else 0))
        height[i] = h
    ready_t = [0] * n
    npred = list(npred)
    ready = []
    def key(i):
        ins = lst[i]
        return (-(height[i] + (asap_boost if ins.asap else 0) + ins.prio), i)
    for i in range(n):
        if npred[i] == 0: ready.append((key(i), i))
    out = []
    t = t0
    mfma_free = t0
    mf_idx = [i for i in range(n) if lst[i].kind == "mfma"]
    mf_ptr = 0
    done = [False] * n
    recent = []
    gap_has_bar = False
    stall_total = 0
    mtimes = []
    def haz_ok(c):
        d = 0
        for p in reversed(recent):
            need = hazard(p, c)
            if need > d: return False
            d += p.nwait
            if d >= MAX_HAZ: break
        return True
    def issue(i):
        nonlocal t, mfma_free, gap_has_bar
        ins = lst[i]
        ready.remove((key(i), i))
        out.append(ins); recent.append(ins)
        if len(recent) > MAX_HAZ + 4: recent.pop(0)
        done[i] = True
        if ins.kind == "mfma":
            mfma_free = t + ins.passes * 4; gap_has_bar = False; mtimes.append(t)
        if ins.kind == "barrier": gap_has_bar = True
        t_issue = t
        t += ins.cost
        for (j, lat) in succ[i]:
            ready_t[j] = max(ready_t[j], t_issue + lat)
            npred[j] -= 1
            if npred[j] == 0: ready.append((key(j), j))
    nleft = n
    while nleft:
        while mf_ptr < len(mf_idx) and done[mf_idx[mf_ptr]]: mf_ptr += 1
        nm = mf_idx[mf_ptr] if mf_ptr < len(mf_idx) else None
        nm_dep = nm is not None and npred[nm] == 0
        nm_t = max(mfma_free, ready_t[nm]) if nm_dep else None
        if nm_dep and nm_t <= t and haz_ok(lst[nm]):
            issue(nm); nleft -= 1
            continue
        best = None
        just_after_mfma = bool(out) and out[-1].kind == "mfma"
        for (k, i) in sorted(ready):
            ins = lst[i]
            if ins.kind == "mfma" or ready_t[i] > t: continue
            if ins.late and nm is not None:
                if height[i] + lazy_margin < height[nm] and nm_dep: continue
                if ins.kind == "barrier" and nm_dep and not just_after_mfma and nm_t == mfma_free: continue
            if nm_dep:
                room = nm_t - t - slack
                need = ins.cost + (4 if ins.kind == "trans" else 0)
                if room > -slack and need > room: continue
            if not haz_ok(ins): continue
            best = i; break
        if best is not None:
            issue(best); nleft -= 1
            continue
        cand_t = [ready_t[i] for (k, i) in ready if ready_t[i] > t]
        if nm_t is not None and nm_t > t: cand_t.append(nm_t)
        if cand_t:
            nt = min(cand_t)
            if nm_t is None or nt > mfma_free: stall_total += nt - max(t, mfma_free if nm is not None else t)
            t = nt
            continue
        lazy = [i for (k, i) in sorted(ready) if lst[i].late and ready_t[i] <= t and haz_ok(lst[i])]
        if lazy:
            issue(lazy[0]); nleft -= 1
            continue
        nop = Inst("s_nop 0", "nop"); out.append(nop); recent.append(nop); t += 4
    if verbose and mtimes:
        gaps = [(k, mtimes[k + 1] - mtimes[k]) for k in range(len(mtimes) - 1)]
        big = [(k, g) for k, g in gaps if g > 32]
        print(f"  first mfma at {mtimes[0] - t0}, last at {mtimes[-1] - t0}, tail {t - mtimes[-1]}; gaps>32: {len(big)} total excess {sum(g - 32 for k, g in big)}: {big[:40]}")
    if verbose: print(f"  scheduled {n} instrs, {len(mf_idx)} mfma, est {t - t0} cycles ({(t - t0) / max(1, len(mf_idx)):.2f}/mfma)")
    return out

def finalize(items, verbose=False):
    out = []
    vmq = []
    lgq = []
    smem_out = []
    recent = []
    def emit(ins):
        out.append(ins); recent.append(ins)
        if len(recent) > MAX_HAZ + 8: recent.pop(0)
    nw = 0
    for it in items:
        if isinstance(it, str):
            out.append(it); continue
        ins = it
        touched_r = set(ins.reads); touched_w = set(ins.writes)
        need_vm = None; need_lg = None
        for k, p in enumerate(vmq):
            pw = set(p.writes)
            if (pw & touched_r) or (pw & touched_w): need_vm = k
        for k, p in enumerate(lgq):
            pw = set(p.writes)
            if (pw & touched_r) or (pw & touched_w): need_lg = k
            elif ins.kind == "barrier" and "%lds_all" in touched_r: need_lg = k
        smem_need = any((set(p.writes) & (touched_r | touched_w)) for p in smem_out)
        parts = []
        if need_vm is not None:
            cnt = len(vmq) - 1 - need_vm
            assert cnt <= 63, cnt
            parts.append(f"vmcnt({cnt})"); vmq = vmq[need_vm + 1:]
        if smem_need:
            parts.append("lgkmcnt(0)"); lgq = []; smem_out = []
        elif need_lg is not None:
            cnt = len(lgq) - 1 - need_lg
            if smem_out: cnt = 0; smem_out = []; lgq = []
            else:
                if cnt > 15: cnt = 15
                lgq = lgq[len(lgq) - cnt:] if cnt else []
            parts.append(f"lgkmcnt({cnt})")
        if parts:
            w = Inst("s_waitcnt " + " ".join(parts), "wait"); emit(w); nw += 1
        d = 0; need_nop = 0
        for p in reversed(recent):
            h = hazard(p, ins)
            if h > d: need_nop = max(need_nop, h - d)
            d += p.nwait
            if d >= MAX_HAZ: break
        while need_nop > 0:
            k = min(need_nop, 16)
            nop = Inst(f"s_nop {k - 1}", "nop"); nop.nwait = k; emit(nop); need_nop -= k
        emit(ins)
        if ins.kind in ("vmem_load", "vmem_store", "dma"):
            vmq.append(ins)
            if len(vmq) > 63:
                raise RuntimeError("more than 63 vmem ops outstanding")
        elif ins.kind in ("ds_read", "ds_write"): lgq.append(ins)
        elif ins.kind == "smem": smem_out.append(ins)
        elif ins.kind == "waitall":
            vmq = []; lgq = []; smem_out = []
    return out

def render(items):
    lines = []
    for it in items:
        if isinstance(it, str): lines.append(it)
        else: lines.append("    " + it.text)
    return "\n".join(lines) + "\n"
```

```python
from asmgen import *
import math
NROW, DM, NH, DH, NK, KOFF = 2048, 512, 32, 128, 512, 1536
FF, FH = 1376, 688
WS_XSTAT = 0x0
WS_Z2STAT = 0x10000
WS_Z1F = 0x100000
WS_Z2R = 0x400000
WS_Z2N = 0x700000
WS_U = 0xA00000
WS_O = 0x1000000
WS_DBG = 0x3000000
WS_SIZE = 268435456
P_X, P_K, P_V, P_WQ, P_WO, P_BX, P_WIN, P_WSP = [S(36 + 2 * i, 2) for i in range(8)]
P_BSP, P_WOUT, P_OUT, P_DBG = [S(52 + 2 * i, 2) for i in range(4)]
P_WS = S(60, 2)
SRD = [S(4 * (i + 1), 4) for i in range(8)]
s_wg = S(2)
s_wave, s_xcd, s_jj, s_head, s_qt = S(62), S(63), S(64), S(65), S(66)
LOG2E = 1.4426950408889634

def prologue(p, nwg=256, end="L_end"):
    p.scmp("s_cmp_ge_u32", s_wg, nwg)
    p.branch(f"s_cbranch_scc1 {end}", reads=["%scc"])
    p.flush(schedule=False)
    p.sload("s_load_dwordx16", S(36, 16), S(0, 2), 0)
    p.sload("s_load_dwordx8", S(52, 8), S(0, 2), 64)
    p.sload("s_load_dwordx2", S(60, 2), S(0, 2), 96)
    p.v("lshrrev_b32", V(1), 6, V(0))
    p.v("and_b32", V(0), 63, V(0))
    p.v("readfirstlane_b32", s_wave, V(1))
    p.s("and_b32", s_xcd, s_wg, 7)
    p.s("lshr_b32", s_jj, s_wg, 3)
    p.s("and_b32", S(67), s_jj, 3)
    p.s("lshl_b32", s_head, s_xcd, 2)
    p.s("add_u32", s_head, s_head, S(67))
    p.s("lshr_b32", s_qt, s_jj, 2)

def make_srd(p, srd, ptr, off=None, size=0, off_imm=0):
    if off is not None:
        p.s("add_u32", srd[0], ptr[0], off)
        p.s("addc_u32", srd[1], ptr[1], 0)
        if off_imm:
            if off_imm > 0:
                p.s("add_u32", srd[0], srd[0], off_imm); p.s("addc_u32", srd[1], srd[1], 0)
            else:
                p.s("sub_u32", srd[0], srd[0], -off_imm); p.s("subb_u32", srd[1], srd[1], 0)
    elif off_imm > 0:
        p.s("add_u32", srd[0], ptr[0], off_imm); p.s("addc_u32", srd[1], ptr[1], 0)
    elif off_imm < 0:
        p.s("sub_u32", srd[0], ptr[0], -off_imm); p.s("subb_u32", srd[1], ptr[1], 0)
    else:
        p.s("mov_b32", srd[0], ptr[0]); p.s("mov_b32", srd[1], ptr[1])
    p.s("and_b32", srd[1], srd[1], 0xffff)
    p.s("mov_b32", srd[2], size)
    p.s("mov_b32", srd[3], 0x20000)

def allreduce_add(p, v, t):
    for sh in (8, 4, 2, 1):
        p.valu("v_add_f32_dpp", v, v, v, mods=f"row_ror:{sh} row_mask:0xf bank_mask:0xf")
    p.v("mov_b32", t, v)
    p.valu("v_permlane16_swap_b32", v, t)
    p.v("add_f32", v, v, t)
    p.v("mov_b32", t, v)
    p.valu("v_permlane32_swap_b32", v, t)
    p.v("add_f32", v, v, t)

def halfswap_op(p, op, v, t):
    p.v("mov_b32", t, v)
    p.valu("v_permlane32_swap_b32", v, t)
    p.v(op, v, v, t)

def round_bf16(p, dst, src):
    p.v("cvt_pk_bf16_f32", dst, src, src)
    p.v("and_b32", dst, 0xffff0000, dst)

def kernel_wrap(name, body, vgpr=512, accum=256, sgpr=102):
    return f""".text
.globl {name}
.p2align 8
.type {name},@function
{name}:
{body}
.p2align 6
"""
def kd(name, vgpr=512, accum=256, sgpr=102):
    return f""".amdhsa_kernel {name}
  .amdhsa_next_free_vgpr {vgpr}
  .amdhsa_next_free_sgpr {sgpr}
  .amdhsa_accum_offset {accum}
  .amdhsa_group_segment_fixed_size 0
  .amdhsa_kernarg_size 104
  .amdhsa_user_sgpr_count 2
  .amdhsa_user_sgpr_kernarg_segment_ptr 1
  .amdhsa_system_sgpr_workgroup_id_x 1
  .amdhsa_float_denorm_mode_32 3
.end_amdhsa_kernel
"""
```

```python
from common import *

def emit_xstats(p, srd_x, srd_ws, vb=8):
    sA = S(67); sB = S(68)
    p.s("lshl_b32", sA, s_qt, 8)
    p.s("lshl_b32", sB, s_head, 3)
    p.s("add_u32", sA, sA, sB)
    p.s("lshl_b32", sB, s_wave, 1)
    p.s("add_u32", sA, sA, sB)
    p.s("lshl_b32", sB, sA, 10)
    voff = V(vb)
    p.v("lshlrev_b32", voff, 4, V(0))
    d = [V(vb + 2, 4), V(vb + 6, 4)]
    p.bload("buffer_load_dwordx4", d[0], voff, srd_x, sB)
    p.bload("buffer_load_dwordx4", d[1], voff, srd_x, sB, offset=1024)
    res = V(vb + 10, 4)
    for r in range(2):
        f = [V(vb + 14 + 8 * r + i) for i in range(8)]
        for i in range(4):
            p.v("lshlrev_b32", f[2 * i], 16, d[r][i])
            p.v("and_b32", f[2 * i + 1], 0xffff0000, d[r][i])
        acc = V(vb + 30 + 2 * r); tmp = V(vb + 31 + 2 * r)
        p.v("add_f32", acc, f[0], f[1])
        for i in range(2, 8): p.v("add_f32", acc, acc, f[i])
        allreduce_add(p, acc, tmp)
        p.v("mul_f32", acc, 1.0 / 512, acc)
        m = res[2 * r]
        round_bf16(p, m, acc)
        for i in range(8): p.v("sub_f32", f[i], f[i], acc)
        sq = V(vb + 34 + 2 * r); tmp2 = V(vb + 35 + 2 * r)
        p.v("mul_f32", sq, f[0], f[0])
        for i in range(1, 8): p.v("fmac_f32", sq, f[i], f[i])
        allreduce_add(p, sq, tmp2)
        p.v("mul_f32", sq, 1.0 / 512, sq)
        round_bf16(p, sq, sq)
        p.v("add_f32", sq, 1e-5, sq)
        round_bf16(p, sq, sq)
        p.v("sqrt_f32", sq, sq)
        round_bf16(p, sq, sq)
        p.v("rcp_f32", res[2 * r + 1], sq)
    p.s("lshl_b32", sB, sA, 3)
    p.v("mov_b32", voff, 0)
    p.flush()
    p.raw("s_mov_b64 exec, 1", writes=["exec"])
    p.bstore("buffer_store_dwordx4", res, voff, srd_ws, sB, offset=WS_XSTAT, flags="sc1", xw=["%st_xstat"])
    p.raw("s_mov_b64 exec, -1", writes=["exec"])
    p.flush(schedule=False)

def gen_k0():
    p = Prog()
    prologue(p, end="L_end_k0")
    make_srd(p, SRD[0], P_X, size=NROW * DM * 2)
    make_srd(p, SRD[1], P_WS, size=WS_SIZE)
    p.flush()
    emit_xstats(p, SRD[0], SRD[1])
    p.label("L_end_k0")
    p.raw("s_endpgm")
    p.flush(schedule=False)
    return p
```

```python
from common import *

XR = 0
WR = 98304
MISC = 159744
LDS_BYTES = 163840
QSCALE = LOG2E / math.sqrt(128.0)
THRESH = 8.0

class Pool:
    def __init__(self, base, n, width):
        self.base, self.n, self.w, self.i = base, n, width, 0
    def next(self):
        r = R(self.base.f, self.base.b + self.i * self.w, self.w); self.i = (self.i + 1) % self.n
        return r

def lane_consts(p, T):
    l = V(0)
    p.v("and_b32", T["l31"], 31, l)
    p.v("lshrrev_b32", T["h"], 5, l)
    p.v("bfe_u32", T["g1"], l, 4, 1)
    p.v("bfe_u32", T["r4"], l, 2, 2)
    p.v("and_b32", T["c4"], 3, l)
    p.v("and_b32", T["t0"], 1, T["c4"])
    p.v("lshlrev_b32", T["t0"], 1, T["t0"])
    p.v("lshrrev_b32", T["t1"], 1, T["c4"])
    p.v("or_b32", T["t0"], T["t0"], T["t1"])
    p.v("lshlrev_b32", T["t0"], 3, T["t0"])
    p.v("lshl_add_u32", T["trc"], T["g1"], 5, T["t0"])
    p.v("lshrrev_b32", T["r16"], 4, l)
    p.v("and_b32", T["s16"], 15, l)
    p.v("lshrrev_b32", T["r8"], 3, l)
    p.v("and_b32", T["s8"], 7, l)

def gen_k1(dbg=None):
    p = Prog()
    prologue(p, end="L_end_k1")
    SX, SWQ, SWIN, SK, SV, SWS = SRD[0], SRD[1], SRD[2], SRD[3], SRD[4], SRD[5]
    sT = [S(67 + i) for i in range(6)]
    s_wX, s_wW, s_wKV = S(74), S(75), S(76)
    s_wqoff, s_winoff = S(77), S(78)
    s_c1, s_c2, s_c3 = S(79), S(80), S(81)
    s_colA, s_colB = S(82), S(83)
    s_tA, s_tB = S(84), S(85)
    s_kv = [S(86), S(87)]
    p.s("lshl_b32", sT[0], s_qt, 18)
    make_srd(p, SX, P_X, off=sT[0], size=256 * 1024)
    p.s("lshl_b32", sT[1], s_head, 8)
    make_srd(p, SWQ, P_WQ, off=sT[1], size=512 * 8192 - 31 * 256)
    make_srd(p, SWIN, P_WIN, off_imm=-2048, size=512 * 2752 + 2048)
    p.s("lshl_b32", sT[2], s_head, 19)
    p.s("add_u32", sT[2], sT[2], KOFF * 256)
    make_srd(p, SK, P_K, off=sT[2], size=NK * 256)
    make_srd(p, SV, P_V, off=sT[2], size=NK * 256)
    make_srd(p, SWS, P_WS, size=WS_SIZE)
    p.s("add_u32", sT[3], s_head, 22)
    p.s("sub_u32", sT[4], s_head, 22)
    p.scmp("s_cmp_lt_u32", s_head, 22)
    p.s("cselect_b32", s_tA, sT[3], sT[4])
    p.s("add_u32", sT[3], s_head, 10)
    p.scmp("s_cmp_lt_u32", s_head, 12)
    p.s("cselect_b32", s_tB, sT[3], 44)
    for (st, sc) in ((s_tA, s_colA), (s_tB, s_colB)):
        p.s("lshl_b32", sT[3], st, 5)
        p.s("sub_u32", sT[4], sT[3], 16)
        p.scmp("s_cmp_lt_u32", st, 22)
        p.s("cselect_b32", sc, sT[3], sT[4])
        p.scmp("s_cmp_lt_u32", st, 44)
        p.s("cselect_b32", sc, sc, 0)
        p.s("lshl_b32", sc, sc, 1)
    p.s("mul_i32", s_wX, s_wave, 24576)
    p.s("mul_i32", s_wW, s_wave, 3072)
    p.s("add_u32", s_wW, s_wW, WR)
    p.s("lshl_b32", s_wKV, s_wave, 11)
    p.s("mov_b32", s_wqoff, 0)
    p.s("mov_b32", s_winoff, 0)
    p.s("mov_b32", s_c1, 14336); p.s("mov_b32", s_c2, 32768); p.s("mov_b32", s_c3, 47104)
    names = ["l31", "h", "g1", "r4", "c4", "t0", "t1", "trc", "r16", "s16", "r8", "s8", "t2", "t3", "w"]
    T = {n: V(128 + i) for i, n in enumerate(names)}
    lane_consts(p, T)
    p.v("mov_b32", T["w"], s_wave)
    v_x = [V(2), V(3)]; v_wq = [V(4), V(5)]; v_win = V(6)
    a_x = [V(8 + j) for j in range(4)]; a_wq = [V(12 + t) for t in range(4)]; a_win = [V(16), V(17)]
    a_csq, a_csw = V(18), V(19)
    v_k = [V(20), V(21)]; v_v = V(22)
    a_k = [V(24 + k) for k in range(8)]; a_v = [V(32 + t) for t in range(4)]
    t0, t1, t2, t3 = T["t0"], T["t1"], T["t2"], T["t3"]
    p.v("lshlrev_b32", t0, 6, T["w"]); p.v("add_u32", t0, t0, T["r8"]); p.v("lshlrev_b32", t0, 10, t0)
    p.v("lshrrev_b32", t1, 1, T["r8"])
    p.v("xor_b32", t2, T["s8"], t1); p.v("lshl_add_u32", v_x[0], t2, 4, t0)
    p.v("or_b32", t1, 4, t1); p.v("xor_b32", t2, T["s8"], t1); p.v("lshl_add_u32", v_x[1], t2, 4, t0)
    p.v("add_u32", v_x[1], 8192 - 1024, v_x[1])
    p.v("lshlrev_b32", t0, 3, T["w"]); p.v("add_u32", t0, t0, T["r16"])
    p.v("lshlrev_b32", t1, 13, t0)
    p.v("lshrrev_b32", t2, 2, T["s16"]); p.v("xor_b32", t2, t2, T["r16"]); p.v("lshlrev_b32", t2, 6, t2)
    p.v("and_b32", t3, 3, T["s16"]); p.v("lshl_add_u32", t2, t3, 4, t2)
    p.v("add_u32", v_wq[0], t1, t2); p.v("add_u32", v_wq[1], 32768 - 1024, v_wq[0])
    p.v("lshl_add_u32", v_v, t0, 8, t2)
    p.v("and_b32", t1, 15, t0); p.v("xor_b32", t1, T["s16"], t1); p.v("lshlrev_b32", t1, 4, t1); p.v("lshl_add_u32", v_k[0], t0, 8, t1)
    p.v("add_u32", t0, 4, t0)
    p.v("and_b32", t1, 15, t0); p.v("xor_b32", t1, T["s16"], t1); p.v("lshlrev_b32", t1, 4, t1); p.v("lshl_add_u32", v_k[1], t0, 8, t1)
    p.v("subrev_u32", v_k[1], 1024, v_k[1])
    p.v("lshlrev_b32", t0, 3, T["w"]); p.v("add_u32", t0, t0, T["r8"])
    p.s("mov_b32", sT[5], 2752)
    p.v("mul_lo_u32", t0, t0, sT[5])
    p.v("lshrrev_b32", t1, 2, T["s8"]); p.v("bfe_u32", t2, T["r8"], 1, 1); p.v("xor_b32", t1, t1, t2)
    p.valu("v_cmp_eq_u32", VCC, 0, t1)
    p.v("mov_b32", t2, s_colB); p.v("mov_b32", t3, s_colA)
    p.valu("v_cndmask_b32", t2, t2, t3)
    p.v("add_u32", t0, t0, t2)
    p.v("and_b32", t3, 3, T["s8"]); p.v("lshl_add_u32", v_win, t3, 4, t0)
    p.v("bfe_u32", t0, T["l31"], 1, 3); p.v("xor_b32", t0, t0, T["h"]); p.v("lshlrev_b32", t0, 4, t0)
    p.v("lshl_add_u32", t0, T["l31"], 7, t0); p.v("add_u32", t0, s_wX, t0)
    for j in range(4): p.v("xor_b32", a_x[j], j << 5, t0)
    p.s("mov_b32", sT[5], 3072)
    p.v("mul_lo_u32", t0, T["h"], sT[5]); p.v("add_u32", t0, WR, t0); p.v("add_u32", t0, t0, T["trc"])
    p.v("lshl_add_u32", t1, T["r4"], 8, t0)
    for t in range(4):
        p.v("xor_b32", t2, t, T["r4"]); p.v("lshl_add_u32", a_wq[t], t2, 6, t1)
    p.v("xor_b32", t2, T["w"], T["r4"]); p.v("lshl_add_u32", a_csq, t2, 6, t1)
    p.v("lshl_add_u32", t1, T["r4"], 7, t0); p.v("add_u32", t1, 2048, t1)
    p.v("lshrrev_b32", t3, 1, T["r4"])
    for tau in range(2):
        p.v("xor_b32", t2, tau, t3); p.v("lshl_add_u32", a_win[tau], t2, 6, t1)
    p.v("and_b32", t2, 1, T["w"]); p.v("xor_b32", t2, t2, t3); p.v("lshl_add_u32", a_csw, t2, 6, t1)
    p.v("lshrrev_b32", t2, 1, T["w"]); p.s("mov_b32", sT[5], 6144); p.v("mul_lo_u32", t2, t2, sT[5]); p.v("add_u32", a_csw, a_csw, t2)
    p.v("and_b32", t0, 0x13, T["l31"]); p.v("bfe_u32", t1, T["l31"], 2, 1); p.v("lshl_or_b32", t0, t1, 3, t0)
    p.v("bfe_u32", t1, T["l31"], 3, 1); p.v("lshl_or_b32", t0, t1, 2, t0)
    p.v("and_b32", t1, 15, t0); p.v("xor_b32", t1, t1, T["h"]); p.v("lshlrev_b32", t1, 4, t1); p.v("lshl_add_u32", t1, t0, 8, t1)
    for kk in range(8): p.v("xor_b32", a_k[kk], kk << 5, t1)
    p.v("lshl_add_u32", t0, T["h"], 3, T["r4"]); p.v("lshlrev_b32", t0, 8, t0); p.v("add_u32", t0, t0, T["trc"]); p.v("add_u32", t0, 65536, t0)
    for t in range(4):
        p.v("xor_b32", t2, t, T["r4"]); p.v("lshl_add_u32", a_v[t], t2, 6, t0)
    xst = [V(36, 2), V(38, 2)]
    p.s("lshl_b32", sT[3], s_qt, 8); p.s("lshl_b32", sT[4], s_wave, 6); p.s("add_u32", sT[3], sT[3], sT[4]); p.s("lshl_b32", sT[3], sT[3], 3)
    p.v("lshlrev_b32", t0, 3, T["l31"])
    for u in range(2):
        p.bload("buffer_load_dwordx2", xst[u], t0, SWS, sT[3], offset=WS_XSTAT + 256 * u, flags="sc1")
    v_l31 = V(40); v_h = V(41)
    p.v("mov_b32", v_l31, T["l31"]); p.v("mov_b32", v_h, T["h"])
    p.flush()

    QACC = lambda u, t: V(128 + 16 * (4 * u + t), 16)
    BACC = lambda tau, u: A(128 + 16 * (2 * tau + u), 16)
    xpool = Pool(A(192), 8, 4)
    wpool = Pool(V(80), 12, 4)
    cspool = Pool(V(64), 3, 4)
    cs_q, cs_w = V(42), V(43)
    ctmp = [V(76), V(77), V(78), V(79)]
    p.v("mov_b32", cs_q, 0); p.v("mov_b32", cs_w, 0)
    xtok = {}; wtok = {}; xrd = {}; wrd = {}
    def dma_x(c):
        slot = c % 3
        toks = []
        for i in range(8):
            if i % 4 == 0: p.s("add_u32", M0, s_wX, slot * 8192 + (i // 4) * 4096)
            soff = [0, 0, s_c1, s_c1, s_c2, s_c2, s_c3, s_c3][i]
            tok = f"%X{c}.{i}"
            p.dma(v_x[i & 1], SX, soff, offset=(i % 4) * 1024, xr=xrd.get(c - 3, []), xw=[tok]); toks.append(tok)
        xtok[c] = toks
        if c < 7:
            p.v("add_u32", v_x[0], 128, v_x[0]); p.v("add_u32", v_x[1], 128, v_x[1])
    def dma_w(hc, xr):
        slot = hc % 5
        p.s("add_u32", M0, s_wW, slot * 12288)
        toks = [f"%W{hc}.{i}" for i in range(3)]
        p.dma(v_wq[0], SWQ, s_wqoff, offset=0, xr=xr, xw=[toks[0]])
        p.dma(v_wq[1], SWQ, s_wqoff, offset=1024, xr=xr, xw=[toks[1]])
        p.dma(v_win, SWIN, s_winoff, offset=2048, xr=xr, xw=[toks[2]])
        wtok[hc] = toks
        if hc < 15:
            p.s("add_u32", s_wqoff, s_wqoff, 32 * 8192); p.s("add_u32", s_winoff, s_winoff, 32 * 2752)
    KP = [2, 5, 0, 3, 6, 1, 4, 7]; VP = [8, 11, 14, 15, 9, 10, 12, 13]
    page_free = {}
    ktok = {}; vtok = {}; krd = {}; vrd = {}
    def dma_kv(which, j):
        page = (KP if which == "K" else VP)[j % 8]
        xr = page_free[page]
        p.s("add_u32", M0, s_wKV, page * 8192)
        so = s_kv[0 if which == "K" else 1]
        p.s("mov_b32", so, j * 8192)
        toks = [f"%{which}{j}.0", f"%{which}{j}.1"]
        if which == "K":
            p.dma(v_k[0], SK, so, offset=0, xr=xr, xw=[toks[0]]); p.dma(v_k[1], SK, so, offset=1024, xr=xr, xw=[toks[1]])
            ktok[j] = toks
        else:
            p.dma(v_v, SV, so, offset=0, xr=xr, xw=[toks[0]]); p.dma(v_v, SV, so, offset=1024, xr=xr, xw=[toks[1]])
            vtok[j] = toks
    dma_x(0); dma_w(0, []); dma_w(1, []); dma_x(1); dma_w(2, []); dma_x(2)
    nrd = [0]
    def tok():
        nrd[0] += 1; return f"%rd{nrd[0]}"
    for hc in range(16):
        xr = list(wtok[hc]) + wrd.get(hc - 2, [])
        xw = [f"%Wrdy{hc}", f"%Wfree{hc - 2}"]
        if hc == 13: xr += xrd[5]; xw.append("%Xfree5")
        if hc == 15: xr += xrd[6]; xw.append("%Xfree6")
        p.barrier(xr=xr, xw=xw)
        if hc + 3 < 16: dma_w(hc + 3, [f"%Wfree{hc - 2}"])
        if hc % 2 == 0 and hc // 2 + 2 < 8 and hc // 2 >= 1: dma_x(hc // 2 + 2)
        if hc == 13:
            for pg in (2, 5, 8, 11): page_free[pg] = ["%Xfree5"]
            page_free[14] = ["%Wfree11"]
            dma_kv("K", 0); dma_kv("K", 1); dma_kv("V", 0)
        if hc == 14:
            page_free[15] = ["%Wfree12"]
            dma_kv("V", 1); dma_kv("V", 2)
        if hc == 15:
            for pg in (0, 3, 6, 9): page_free[pg] = ["%Xfree6"]
            dma_kv("K", 2); dma_kv("K", 3)
        wrd[hc] = []
        slot = hc % 5
        for kk in range(2):
            ks = 2 * hc + kk; c = ks // 4; j = ks % 4
            xrd.setdefault(c, [])
            xf = []
            for u in range(2):
                r = xpool.next(); tk = tok()
                i = p.ds_read("ds_read_b128", r, a_x[j], offset=(c % 3) * 8192 + u * 4096, xr=xtok[c][4 * u:4 * u + 4]); i.writes.append(tk); xrd[c].append(tk)
                xf.append(r)
            def trfrag(pool, addr, base, step, lst):
                r = pool.next()
                for i2 in range(2):
                    tk = tok()
                    i = p.ds_read("ds_read_b64_tr_b16", r[2 * i2:2 * i2 + 2], addr, offset=base + i2 * step, xr=[f"%Wrdy{hc}"]); i.writes.append(tk); lst.append(tk)
                return r
            base = slot * 12288 + kk * 6144
            for t in range(4):
                wf = trfrag(wpool, a_wq[t], base, 1024, wrd[hc])
                for u in range(2): p.mfma(QACC(u, t), wf, xf[u], QACC(u, t) if ks else 0)
            for tau in range(2):
                wf = trfrag(wpool, a_win[tau], base, 512, wrd[hc])
                for u in range(2): p.mfma(BACC(tau, u), wf, xf[u], BACC(tau, u) if ks else 0)
            def colsum(fr, acc):
                for q in range(4):
                    p.v("lshlrev_b32", ctmp[0], 16, fr[q]); p.v("add_f32", acc, acc, ctmp[0])
                    p.v("and_b32", ctmp[1], 0xffff0000, fr[q]); p.v("add_f32", acc, acc, ctmp[1])
            colsum(trfrag(cspool, a_csq, base, 1024, wrd[hc]), cs_q)
            if kk == 0: colsum(trfrag(cspool, a_csw, slot * 12288, 512, wrd[hc]), cs_w)
    halfswap_op(p, "add_f32", cs_q, ctmp[0]); halfswap_op(p, "add_f32", cs_w, ctmp[1])
    a_m = ctmp[2]
    p.v("lshlrev_b32", a_m, 2, v_l31); p.v("add_u32", a_m, MISC, a_m)
    a_mw = ctmp[3]
    p.s("lshl_b32", sT[0], s_wave, 7)
    p.v("add_u32", a_mw, sT[0], a_m)
    p.ds_write("ds_write_b32", a_mw, cs_q, offset=0, xw=["%csw0"])
    p.ds_write("ds_write_b32", a_mw, cs_w, offset=512, xw=["%csw1"])
    p.barrier(xr=["%csw0", "%csw1"] + xrd[7] + wrd[14] + wrd[15], xw=["%csrdy", "%Xfree7", "%Wfree15"])
    csv = [V(64 + i) for i in range(8)]
    for i in range(8): p.ds_read("ds_read_b32", csv[i], a_m, offset=128 * i, xr=["%csrdy"])
    p.v("add_f32", csv[4], csv[4], csv[6]); p.v("add_f32", csv[5], csv[5], csv[7])
    AF = [V(80 + 4 * i, 4) for i in range(6)]; BF = [V(104 + 4 * u, 4) for u in range(2)]
    for i in range(6):
        hi = V(72); lo = V(73)
        p.v("cvt_pk_bf16_f32", hi, csv[i], csv[i]); p.v("and_b32", hi, 0xffff0000, hi)
        p.v("sub_f32", lo, csv[i], hi)
        p.v("cvt_pk_bf16_f32", AF[i][0], hi, lo)
        for q in range(1, 4): p.v("mov_b32", AF[i][q], 0)
    p.valu("v_cmp_eq_u32", VCC, 0, v_h)
    for u in range(2):
        p.v("cvt_pk_bf16_f32", V(72), xst[u][0], xst[u][0]); p.v("xor_b32", V(72), 0x80008000, V(72))
        p.valu("v_cndmask_b32", BF[u][0], 0, V(72))
        for q in range(1, 4): p.v("mov_b32", BF[u][q], 0)
    for t in range(4):
        for u in range(2): p.mfma(QACC(u, t), AF[t], BF[u], QACC(u, t))
    for tau in range(2):
        for u in range(2): p.mfma(BACC(tau, u), AF[4 + tau], BF[u], BACC(tau, u))
    for pg in (1, 4, 7, 10): page_free[pg] = ["%Xfree7"]
    for pg in (12, 13): page_free[pg] = ["%Wfree15"]
    dma_kv("K", 4); dma_kv("V", 3); dma_kv("K", 5); dma_kv("V", 4)
    QF = lambda u, kk: V(192 + 8 * (4 * u + kk // 2) + 4 * (kk % 2), 4)
    qs = [V(74), V(75)]
    for u in range(2): p.v("mul_f32", qs[u], QSCALE, xst[u][1])
    for idx in range(7, -1, -1):
        u, t = idx // 4, idx % 4
        acc = QACC(u, t)
        for r in range(16): p.v("mul_f32", acc[r], acc[r], qs[u])
        for i in range(7, -1, -1): p.v("cvt_pk_bf16_f32", V(192 + 8 * idx + i), acc[2 * i], acc[2 * i + 1])
    p.flush(verbose=True)
    if dbg == "q":
        p.s("lshl_b32", sT[0], s_wg, 16); p.s("lshl_b32", sT[1], s_wave, 14); p.s("add_u32", sT[0], sT[0], sT[1]); p.s("add_u32", sT[0], sT[0], WS_DBG)
        p.v("lshlrev_b32", V(64), 4, V(0))
        for u in range(2):
            for kk in range(8):
                p.s("add_u32", sT[1], sT[0], (u * 8 + kk) * 1024)
                p.bstore("buffer_store_dwordx4", QF(u, kk), V(64), SWS, sT[1])
        p.flush(schedule=False)

    C0 = -2.0 * math.sqrt(2.0 / math.pi) * LOG2E; C1 = C0 * 0.044715
    s_C1 = S(88); p.s("mov_b32", s_C1, C1) if False else None
    v_c1 = V(44); v_c0 = V(45)
    p.v("mov_b32", v_c1, C1); p.v("mov_b32", v_c0, C0)
    voff16 = V(46)
    p.v("lshlrev_b32", voff16, 4, V(0))
    voff8 = V(47)
    p.v("lshlrev_b32", voff8, 3, v_l31)
    for tau in range(2):
        st = (s_tA, s_tB)[tau]
        s_zb = S(89 + tau); s_sb = S(91 + tau)
        p.s("lshl_b32", sT[0], s_qt, 3); p.s("lshl_b32", sT[1], s_wave, 1); p.s("add_u32", sT[0], sT[0], sT[1])
        p.s("mul_i32", sT[0], sT[0], 44 * 1024)
        p.s("lshl_b32", sT[1], st, 11)
        p.s("add_u32", sT[2], sT[1], WS_Z1F)
        p.s("add_u32", sT[3], sT[1], WS_Z2R - 44 * 1024)
        p.scmp("s_cmp_lt_u32", st, 22)
        p.s("cselect_b32", s_zb, sT[2], sT[3])
        p.s("add_u32", s_zb, s_zb, sT[0])
        p.scmp("s_cmp_lt_u32", st, 44)
        p.s("cselect_b32", s_zb, s_zb, WS_SIZE)
        p.s("sub_u32", sT[1], st, 22); p.s("lshl_b32", sT[1], sT[1], 11)
        p.s("lshl_b32", sT[2], s_qt, 8); p.s("add_u32", sT[1], sT[1], sT[2]); p.s("lshl_b32", sT[2], s_wave, 6); p.s("add_u32", sT[1], sT[1], sT[2])
        p.s("lshl_b32", sT[1], sT[1], 3); p.s("add_u32", sT[1], sT[1], WS_Z2STAT)
        p.scmp("s_cmp_lt_u32", st, 22); p.s("cselect_b32", s_sb, WS_SIZE, sT[1])
        p.scmp("s_cmp_lt_u32", st, 44); p.s("cselect_b32", s_sb, s_sb, WS_SIZE)
        s_msk = S(93 + tau)
        p.scmp("s_cmp_eq_u32", st, 43); p.s("cselect_b32", s_msk, 0, 1.0)
        for u in range(2):
            acc = BACC(tau, u)
            zs = [V(128 + 32 * (2 * tau + u) % 64 + r) for r in range(16)]
            zs = [V(128 + 16 * ((2 * tau + u) % 4) + r) for r in range(16)]
            pk = V(96 + 8 * ((2 * tau + u) % 4), 8)
            sm = [V(48), V(49), V(50), V(51)]
            tt = [V(52 + i) for i in range(8)]
            for r in range(16):
                x = zs[r]; a = tt[(2 * r) % 8]; b = tt[(2 * r + 1) % 8]
                p.v("accvgpr_read_b32", x, acc[r])
                p.v("mul_f32", x, x, xst[u][1])
                p.v("mul_f32", a, x, x)
                p.v("fma_f32", a, a, v_c1, v_c0)
                p.v("mul_f32", a, a, x)
                p.v("exp_f32", a, a)
                p.v("add_f32", a, 1.0, a)
                p.v("rcp_f32", a, a)
                p.v("mul_f32", x, x, a)
                k = 0 if r < 8 else 2
                if r % 8 == 0:
                    p.v("mov_b32", sm[k], x); p.v("mul_f32", sm[k + 1], x, x)
                else:
                    p.v("add_f32", sm[k], sm[k], x); p.v("fmac_f32", sm[k + 1], x, x)
            for i in range(8): p.v("cvt_pk_bf16_f32", pk[i], zs[2 * i], zs[2 * i + 1])
            for kk in range(2):
                p.s("add_u32", sT[4 + kk], s_zb, u * 44 * 1024 + kk * 1024)
                p.bstore("buffer_store_dwordx4", pk[4 * kk:4 * kk + 4], voff16, SWS, sT[4 + kk], flags="sc1", xw=[f"%stz{tau}{u}{kk}"])
            p.v("fma_f32", sm[0], sm[2], s_msk, sm[0]); p.v("fma_f32", sm[1], sm[3], s_msk, sm[1])
            halfswap_op(p, "add_f32", sm[0], tt[0]); halfswap_op(p, "add_f32", sm[1], tt[1])
            p.s("add_u32", sT[3], s_sb, u * 256)
            p.bstore("buffer_store_dwordx2", V(48, 2), voff8, SWS, sT[3], flags="sc1", xw=[f"%sts{tau}{u}"])
    p.flush(verbose=True)

    SB = lambda j, u: V(128 + 32 * (j % 2) + 16 * u, 16)
    PB = lambda j, u, pp: V(96 + 16 * (j % 2) + 8 * u + 4 * pp, 4)
    NEGM = lambda u: V(64 + 16 * u, 16)
    lsum = [[V(48), V(49)], [V(50), V(51)]]
    mx = V(52); mt = [V(53), V(54), V(55), V(56)]
    v_thr = V(57)
    kvpool = Pool(A(192), 16, 4)
    p.v("mov_b32", v_thr, THRESH)
    for u in range(2):
        p.v("mov_b32", lsum[u][0], 0); p.v("mov_b32", lsum[u][1], 0)
    def qk(j):
        page = KP[j % 8]; krd[j] = []
        for kk in range(8):
            r = kvpool.next(); tk = tok()
            i = p.ds_read("ds_read_b128", r, a_k[kk], offset=page * 8192, xr=[f"%Krdy{j}"]); i.writes.append(tk); krd[j].append(tk)
            for u in range(2):
                c = SB(j, u) if kk else (NEGM(u) if j else 0)
                p.mfma(SB(j, u), r, QF(u, kk), c)
    def pv(j):
        page = VP[j % 8]; vrd[j] = []
        for pp in range(2):
            for t in range(4):
                r = kvpool.next()
                for i2 in range(2):
                    tk = tok()
                    i = p.ds_read("ds_read_b64_tr_b16", r[2 * i2:2 * i2 + 2], a_v[t], offset=(page - 8) * 8192 + pp * 4096 + i2 * 1024, xr=[f"%Vrdy{j}"]); i.writes.append(tk); vrd[j].append(tk)
                for u in range(2):
                    o = A(16 * (4 * u + t), 16)
                    p.mfma(o, r, PB(j, u, pp), o if (j or pp) else 0)
    def maxchk(j):
        first = True
        vals = [SB(j, u)[r] for u in range(2) for r in range(16)]
        p.v("max3_f32", mx, vals[0], vals[1], vals[2])
        k = 3
        while k + 1 < 32:
            p.v("max3_f32", mx, vals[k], vals[k + 1], mx); k += 2
        p.v("max_f32", mx, vals[31], mx)
        p.valu("v_cmp_lt_f32", VCC, v_thr, mx)
    state = lambda j: [A(0, 128), V(48, 4), V(53, 4), V(64, 32), SB(j, 0), SB(j, 1)]
    s_ret = S(96, 2)
    def rare(j):
        q = Prog()
        q.nop(15)
        for u in range(2):
            s = SB(j, u)
            q.v("max3_f32", mt[0], s[0], s[1], s[2])
            k = 3
            while k + 1 < 16:
                q.v("max3_f32", mt[0], s[k], s[k + 1], mt[0]); k += 2
            q.v("max_f32", mt[0], s[15], mt[0])
            halfswap_op(q, "max_f32", mt[0], mt[1])
            q.v("max_f32", mt[0], 0, mt[0])
            q.v("sub_f32", mt[1], 0, mt[0]); q.v("exp_f32", mt[1], mt[1])
            for r in range(16):
                q.v("sub_f32", s[r], s[r], mt[0])
                q.v("sub_f32", NEGM(u)[r], NEGM(u)[r], mt[0])
            q.v("mul_f32", lsum[u][0], lsum[u][0], mt[1]); q.v("mul_f32", lsum[u][1], lsum[u][1], mt[1])
            for r in range(64):
                o = A(64 * u + r); tv = mt[2 + (r & 1)]
                q.v("accvgpr_read_b32", tv, o); q.v("mul_f32", tv, tv, mt[1]); q.v("accvgpr_write_b32", o, tv)
        q.nop(3)
        q.branch(f"s_setpc_b64 {s_ret}")
        q.flush(schedule=False)
        return q
    def first_block():
        for u in range(2):
            s = SB(0, u); m = mt[2 * u]; t = mt[2 * u + 1]
            p.v("max3_f32", m, s[0], s[1], s[2])
            k = 3
            while k + 1 < 16:
                p.v("max3_f32", m, s[k], s[k + 1], m); k += 2
            p.v("max_f32", m, s[15], m)
            halfswap_op(p, "max_f32", m, t)
            p.v("sub_f32", t, 0, m)
            for r in range(16):
                p.v("mov_b32", NEGM(u)[r], t)
                p.v("sub_f32", s[r], s[r], m)
    def softmax(j):
        for u in range(2):
            s = SB(j, u)
            for r in range(16): p.v("exp_f32", s[r], s[r])
            for pp in range(2):
                for i in range(4): p.v("cvt_pk_bf16_f32", PB(j, u, pp)[i], s[8 * pp + 2 * i], s[8 * pp + 2 * i + 1])
            for r in range(16): p.v("add_f32", lsum[u][r & 1], lsum[u][r & 1], s[r])
    def att_barrier(n, rdyK, rdyV, frees):
        xr = []; xw = []
        if rdyK is not None: xr += ktok[rdyK]; xw.append(f"%Krdy{rdyK}")
        if rdyV is not None: xr += vtok[rdyV]; xw.append(f"%Vrdy{rdyV}")
        for (w, j) in frees:
            xr += (krd if w == "K" else vrd)[j]; xw.append(f"%{w}free{j}")
            page_free[(KP if w == "K" else VP)[j % 8]] = [f"%{w}free{j}"]
        p.barrier(xr=xr, xw=xw)
    rares = []
    nextK, nextV = 6, 5
    att_barrier(0, 0, None, [])
    qk(0)
    first_block()
    for s in range(16):
        frees = []
        if s >= 1: frees.append(("K", s - 1))
        if s >= 2: frees.append(("V", s - 2))
        att_barrier(s + 1, s + 1 if s + 1 < 16 else None, s, frees)
        if s >= 1 and nextK < 16 and (nextK - 8) <= s - 1: dma_kv("K", nextK); nextK += 1
        elif nextK < 8: dma_kv("K", nextK); nextK += 1
        if s >= 2 and nextV < 16 and (nextV - 8) <= s - 2: dma_kv("V", nextV); nextV += 1
        elif nextV < 8: dma_kv("V", nextV); nextV += 1
        if s + 1 < 16: qk(s + 1)
        softmax(s)
        pv(s)
        if s + 1 < 16:
            maxchk(s + 1)
            nm = f"L_rare{s + 1}"
            st = state(s + 1)
            p.branch(f"s_cbranch_vccnz {nm}\n{nm}_ret:", reads=[VCC] + st, writes=st)
            rares.append(nm)
    assert nextK == 16 and nextV == 16, (nextK, nextV)
    inv = [V(52), V(53)]
    for u in range(2):
        p.v("add_f32", lsum[u][0], lsum[u][0], lsum[u][1])
        halfswap_op(p, "add_f32", lsum[u][0], mt[2])
        p.v("rcp_f32", inv[u], lsum[u][0])
    p.s("lshl_b32", sT[0], s_qt, 3); p.s("lshl_b32", sT[1], s_wave, 1); p.s("add_u32", sT[0], sT[0], sT[1])
    p.s("lshl_b32", sT[0], sT[0], 18)
    p.s("lshl_b32", sT[1], s_head, 13)
    p.s("add_u32", sT[0], sT[0], sT[1]); p.s("add_u32", sT[0], sT[0], WS_O)
    opool = Pool(V(128), 4, 16); ppool = Pool(V(192), 8, 4)
    for u in range(2):
        for t in range(4):
            tv = opool.next()
            for r in range(16):
                p.v("accvgpr_read_b32", tv[r], A(16 * (4 * u + t) + r)); p.v("mul_f32", tv[r], tv[r], inv[u])
            for kk in range(2):
                pk = ppool.next()
                for i in range(4): p.v("cvt_pk_bf16_f32", pk[i], tv[8 * kk + 2 * i], tv[8 * kk + 2 * i + 1])
                so = S(94 + (2 * t + kk) % 4)
                p.s("add_u32", so, sT[0], u * 256 * 1024 + (2 * t + kk) * 1024)
                p.bstore("buffer_store_dwordx4", pk, voff16, SWS, so, flags="sc1", xw=[f"%sto{u}{t}{kk}"])
    p.flush(verbose=True)
    p.raw("s_endpgm"); p.flush(schedule=False)
    for k, nm in enumerate(rares):
        p.label(nm)
        p.raw(f"s_call_b64 {s_ret}, L_rescale{(k + 1) % 2}", kind="branch")
        p.raw(f"s_branch {nm}_ret", kind="branch")
        p.flush(schedule=False)
    for par in range(2):
        p.label(f"L_rescale{par}")
        p.out += rare(par).out
    p.label("L_end_k1")
    p.raw("s_endpgm"); p.flush(schedule=False)
    return p
```

```python
from common import *
from k1 import Pool, lane_consts

def emit_norm(p, SWS, s_ft, lds_base, T, vb=64, raw=None, sT=None):
    voff16 = V(vb); voff8 = V(vb + 1); a_w = V(vb + 2); a_r = V(vb + 3)
    p.v("lshlrev_b32", voff16, 4, V(0))
    p.v("lshlrev_b32", voff8, 3, T["l31"])
    p.s("mov_b32", sT[0], 11 * 2048 * 8)
    p.v("mul_lo_u32", a_w, T["h"], sT[0]); p.v("add_u32", voff8, voff8, a_w)
    p.s("lshl_b32", sT[0], s_qt, 8); p.s("lshl_b32", sT[1], s_wave, 6); p.s("add_u32", sT[0], sT[0], sT[1])
    p.s("lshl_b32", sT[1], sT[0], 3); p.s("add_u32", sT[1], sT[1], WS_Z2STAT)
    p.s("lshl_b32", sT[2], s_wave, 12); p.s("add_u32", sT[2], sT[2], lds_base)
    p.v("lshlrev_b32", a_w, 6, T["l31"]); p.v("lshl_add_u32", a_w, T["h"], 4, a_w); p.v("add_u32", a_w, sT[2], a_w)
    p.v("lshl_add_u32", a_r, T["h"], 3, T["r4"]); p.v("lshlrev_b32", a_r, 6, a_r); p.v("add_u32", a_r, a_r, T["trc"]); p.v("add_u32", a_r, sT[2], a_r)
    p.s("lshl_b32", sT[3], s_ft, 7); p.s("lshr_b32", sT[4], sT[0], 4); p.s("add_u32", sT[3], sT[3], sT[4]); p.s("lshl_b32", sT[3], sT[3], 10)
    p.s("add_u32", sT[3], sT[3], WS_Z2N)
    if raw is None:
        p.s("lshr_b32", sT[4], sT[0], 5); p.s("mul_i32", sT[4], sT[4], 44 * 1024); p.s("lshl_b32", sT[5], s_ft, 11); p.s("add_u32", sT[4], sT[4], sT[5])
        p.s("add_u32", sT[4], sT[4], WS_Z2R)
    for u in range(2):
        b = vb + 4 + 44 * u
        st = [V(b + 2 * i, 2) for i in range(11)]
        rw = V(b + 22, 8) if raw is None else raw[u]
        for i in range(11):
            p.s("add_u32", sT[5], sT[1], i * 2048 * 8 + u * 256)
            p.bload("buffer_load_dwordx2", st[i], voff8, SWS, sT[5], flags="sc1")
        if raw is None:
            for kk in range(2):
                p.s("add_u32", sT[5], sT[4], u * 44 * 1024 + kk * 1024)
                p.bload("buffer_load_dwordx4", rw[4 * kk:4 * kk + 4], voff16, SWS, sT[5], flags="sc1")
        sm, sq, t0, t1 = V(b + 30), V(b + 31), V(b + 32), V(b + 33)
        p.v("add_f32", sm, st[0][0], st[1][0]); p.v("add_f32", sq, st[0][1], st[1][1])
        for i in range(2, 11):
            p.v("add_f32", sm, sm, st[i][0]); p.v("add_f32", sq, sq, st[i][1])
        halfswap_op(p, "add_f32", sm, t0); halfswap_op(p, "add_f32", sq, t1)
        p.v("mul_f32", sm, 1.0 / 688, sm)
        p.v("mul_f32", sq, 1.0 / 688, sq)
        p.v("fma_f32", sq, sm, sm, sq, mods="neg_lo:[1,0,0]") if False else None
        p.v("mul_f32", t0, sm, sm); p.v("sub_f32", sq, sq, t0)
        p.v("max_f32", sq, 0, sq)
        round_bf16(p, sm, sm)
        round_bf16(p, sq, sq); p.v("add_f32", sq, 1e-5, sq); round_bf16(p, sq, sq)
        p.v("sqrt_f32", sq, sq); round_bf16(p, sq, sq); p.v("rcp_f32", sq, sq)
        f = [V(b + 34 + i) for i in range(8)]
        for kk in range(2):
            for i in range(4):
                lo, hi = f[2 * i], f[2 * i + 1]
                p.v("lshlrev_b32", lo, 16, rw[4 * kk + i]); p.v("and_b32", hi, 0xffff0000, rw[4 * kk + i])
                p.v("sub_f32", lo, lo, sm); p.v("sub_f32", hi, hi, sm)
                p.v("mul_f32", lo, lo, sq); p.v("mul_f32", hi, hi, sq)
                p.v("cvt_pk_bf16_f32", rw[4 * kk + i], lo, hi)
            p.ds_write("ds_write_b128", a_w, rw[4 * kk:4 * kk + 4], offset=u * 2048 + kk * 32, xw=[f"%nz{u}{kk}"])
        for pp in range(2):
            fr = V(b + 4 * pp, 4)
            for i2 in range(2):
                p.ds_read("ds_read_b64_tr_b16", fr[2 * i2:2 * i2 + 2], a_r, offset=u * 2048 + pp * 1024 + i2 * 256, xr=[f"%nz{u}0", f"%nz{u}1"])
            so = S(94 + 2 * u + pp)
            p.s("add_u32", so, sT[3], (2 * u + pp) * 1024)
            p.bstore("buffer_store_dwordx4", fr, voff16, SWS, so, flags="sc1", xw=[f"%stn{u}{pp}"])

def gen_k2():
    p = Prog()
    prologue(p, end="L_end_k2")
    p.scmp("s_cmp_ge_u32", s_head, 22)
    p.branch("s_cbranch_scc1 L_end_k2", reads=["%scc"])
    p.flush(schedule=True)
    make_srd(p, SRD[0], P_WS, size=WS_SIZE)
    names = ["l31", "h", "g1", "r4", "c4", "t0", "t1", "trc", "r16", "s16", "r8", "s8"]
    T = {n: V(8 + i) for i, n in enumerate(names)}
    lane_consts(p, T)
    sT = [S(67 + i) for i in range(6)]
    emit_norm(p, SRD[0], s_head, 0, T, vb=64, sT=sT)
    p.flush()
    p.label("L_end_k2")
    p.raw("s_endpgm"); p.flush(schedule=False)
    return p
```

```python
from common import *
from k1 import Pool, lane_consts

def emit_b2(p, T, sT, SWS, SSP, SBS):
    s_tau, s_phi = S(74), S(75)
    p.s("and_b32", s_tau, s_jj, 3); p.s("lshl_b32", sT[0], s_xcd, 2); p.s("add_u32", s_tau, s_tau, sT[0])
    p.s("lshr_b32", s_phi, s_jj, 2)
    p.s("lshl_b32", sT[0], s_tau, 18)
    make_srd(p, SSP, P_WSP, off=sT[0], size=64 * 4096)
    make_srd(p, SBS, P_BSP, size=4096)
    s_wL = S(76)
    p.s("lshl_b32", s_wL, s_wave, 15)
    s_c = [S(77), S(78), S(79)]
    p.s("mov_b32", s_c[0], 65536 - 2048); p.s("mov_b32", s_c[1], 131072); p.s("mov_b32", s_c[2], 196608 - 2048)
    v_s = [V(2), V(3)]; a_b = [V(4 + j) for j in range(4)]; voff16 = V(8)
    t0, t1, t2 = T["t0"], T["t1"], T["t2"]
    p.v("lshlrev_b32", voff16, 4, V(0))
    p.v("lshlrev_b32", t0, 12, T["r8"]); p.s("lshl_b32", sT[1], s_wave, 10); p.v("add_u32", t0, sT[1], t0)
    p.v("lshrrev_b32", t1, 1, T["r8"])
    p.v("xor_b32", t2, T["s8"], t1); p.v("lshl_add_u32", v_s[0], t2, 4, t0)
    p.v("or_b32", t1, 4, t1); p.v("xor_b32", t2, T["s8"], t1); p.v("lshl_add_u32", v_s[1], t2, 4, t0)
    p.v("add_u32", v_s[1], 32768 - 1024, v_s[1])
    p.v("bfe_u32", t0, T["l31"], 1, 3); p.v("xor_b32", t0, t0, T["h"]); p.v("lshlrev_b32", t0, 4, t0)
    p.v("lshl_add_u32", t0, T["l31"], 7, t0); p.v("add_u32", t0, s_wL, t0)
    for j in range(4): p.v("xor_b32", a_b[j], j << 5, t0)
    s_z = [S(80), S(81), S(82)]
    for ft in range(3):
        p.s("mul_i32", sT[0], s_phi, 3); p.s("add_u32", sT[0], sT[0], ft); p.s("min_u32", sT[0], sT[0], 21)
        p.s("lshl_b32", sT[0], sT[0], 7); p.s("lshl_b32", sT[1], s_wave, 5); p.s("add_u32", sT[0], sT[0], sT[1]); p.s("lshl_b32", sT[0], sT[0], 10)
        p.s("add_u32", s_z[ft], sT[0], WS_Z2N)
    ACC = lambda ft, u: A(16 * (2 * ft + u), 16)
    apool = Pool(V(128), 24, 4); bpool = Pool(V(96), 8, 4)
    NSL = 4
    stok = {}; srd_ = {}
    cnt = [0]
    def tok():
        cnt[0] += 1; return f"%b2rd{cnt[0]}"
    def dma_s(c):
        slot = c % NSL; toks = []
        for i in range(8):
            if i % 4 == 0: p.s("add_u32", M0, s_wL, slot * 8192 + (i // 4) * 4096)
            soff = [0, 0, s_c[0], s_c[0], s_c[1], s_c[1], s_c[2], s_c[2]][i]
            tk = f"%SP{c}.{i}"
            p.dma(v_s[i & 1], SSP, soff, offset=(i % 4) * 1024, xr=srd_.get(c - NSL, []), xw=[tk]); toks.append(tk)
        stok[c] = toks
        if c < 7:
            p.v("add_u32", v_s[0], 128, v_s[0]); p.v("add_u32", v_s[1], 128, v_s[1])
    for c in range(NSL - 1): dma_s(c)
    for c in range(8):
        if c + NSL - 1 < 8: dma_s(c + NSL - 1)
        srd_[c] = []
        for j in range(4):
            ks = 4 * c + j
            af = []
            for ft in range(3):
                r = apool.next(); p.bload("buffer_load_dwordx4", r, voff16, SWS, s_z[ft], offset=j * 1024, flags="sc1"); af.append(r)
            bf = []
            for u in range(2):
                r = bpool.next(); tk = tok()
                i = p.ds_read("ds_read_b128", r, a_b[j], offset=(c % NSL) * 8192 + u * 4096, xr=stok[c][4 * u:4 * u + 4]); i.writes.append(tk); srd_[c].append(tk)
                bf.append(r)
            for ft in range(3):
                for u in range(2): p.mfma(ACC(ft, u), af[ft], bf[u], ACC(ft, u) if ks else 0)
        if c < 7:
            for ft in range(3): p.s("add_u32", s_z[ft], s_z[ft], 4096)
    s_un = [S(83), S(84), S(85)]
    s_ub = [S(86), S(87), S(88)]
    s_ur = [S(89), S(90), S(91)]
    z1f = [V(16 + 4 * i, 4) for i in range(3)]
    bia = [V(28 + i) for i in range(3)]
    for i in range(3):
        p.s("mul_i32", s_un[i], s_wave, 3); p.s("add_u32", s_un[i], s_un[i], i)
        p.s("lshr_b32", sT[0], s_un[i], 2)
        p.s("mul_i32", sT[1], s_phi, 3); p.s("add_u32", sT[1], sT[1], sT[0])
        p.s("lshr_b32", sT[2], s_un[i], 1); p.s("and_b32", sT[2], sT[2], 1)
        p.s("and_b32", sT[3], s_un[i], 1)
        p.s("lshl_b32", sT[4], s_tau, 1); p.s("add_u32", sT[4], sT[4], sT[2]); p.s("mul_i32", sT[4], sT[4], 44)
        p.s("lshl_b32", sT[5], sT[1], 1); p.s("add_u32", sT[4], sT[4], sT[5]); p.s("add_u32", sT[4], sT[4], sT[3]); p.s("lshl_b32", sT[4], sT[4], 10)
        p.scmp("s_cmp_lt_u32", sT[1], 22)
        p.s("cselect_b32", s_ub[i], sT[4], WS_SIZE)
        p.s("lshr_b32", sT[5], s_un[i], 1); p.s("lshl_b32", sT[5], sT[5], 12); p.s("lshl_b32", sT[3], sT[3], 11); p.s("add_u32", s_ur[i], sT[5], sT[3])
        p.s("add_u32", sT[0], s_ub[i], WS_Z1F)
        p.bload("buffer_load_dwordx4", z1f[i], voff16, SWS, sT[0], flags="sc1")
        p.s("lshl_b32", sT[5], s_tau, 6); p.s("lshl_b32", sT[2], sT[2], 5); p.s("add_u32", sT[5], sT[5], sT[2]); p.s("lshl_b32", sT[5], sT[5], 1)
        p.v("lshlrev_b32", V(31), 1, T["l31"])
        p.bload("buffer_load_ushort", bia[i], V(31), SBS, sT[5])
    allrd = [t for c in range(8) for t in srd_[c]]
    p.barrier(xr=srd_[7] + srd_[6] + srd_[5] + srd_[4], xw=["%b2free"])
    a_w = V(9); p.s("mul_i32", sT[0], s_wave, 24576); p.v("add_u32", a_w, sT[0], voff16)
    wt = []
    for ti in range(6):
        for qd in range(4):
            tk = f"%b2w{ti}{qd}"; wt.append(tk)
            p.ds_write("ds_write_b128", a_w, A(16 * ti + 4 * qd, 4), offset=ti * 4096 + qd * 1024, xr=["%b2free"], xw=[tk])
    p.barrier(xr=wt, xw=["%b2rdy"])
    for i in range(3):
        a_r = V(10 + i); p.v("add_u32", a_r, s_ur[i], voff16)
        part = [V(128 + 32 * i + 8 * w, 8) for w in range(4)]
        for w in range(4):
            if w < 2:
                for q in range(2): p.ds_read("ds_read_b128", part[w][4 * q:4 * q + 4], a_r, offset=w * 24576 + q * 1024, xr=["%b2rdy"])
            else:
                a_r2 = V(13 + i)
                if w == 2: p.v("add_u32", a_r2, 49152, a_r)
                for q in range(2): p.ds_read("ds_read_b128", part[w][4 * q:4 * q + 4], a_r2, offset=(w - 2) * 24576 + q * 1024, xr=["%b2rdy"])
        g = part[0]
        p.v("lshlrev_b32", bia[i], 16, bia[i])
        for r in range(8):
            p.v("add_f32", g[r], g[r], part[1][r]); p.v("add_f32", part[2][r], part[2][r], part[3][r]); p.v("add_f32", g[r], g[r], part[2][r])
        for q in range(4):
            a, b = g[2 * q], g[2 * q + 1]; pk = part[1][q]; lo, hi = part[2][2 * q], part[2][2 * q + 1]
            p.v("cvt_pk_bf16_f32", pk, a, b)
            p.v("lshlrev_b32", a, 16, pk); p.v("and_b32", b, 0xffff0000, pk)
            p.v("add_f32", a, a, bia[i]); p.v("add_f32", b, b, bia[i])
            p.v("cvt_pk_bf16_f32", pk, a, b)
            p.v("lshlrev_b32", a, 16, pk); p.v("and_b32", b, 0xffff0000, pk)
            p.v("lshlrev_b32", lo, 16, z1f[i][q]); p.v("and_b32", hi, 0xffff0000, z1f[i][q])
            p.v("mul_f32", a, a, lo); p.v("mul_f32", b, b, hi)
            p.v("cvt_pk_bf16_f32", part[3][q], a, b)
        p.s("add_u32", sT[i], s_ub[i], WS_U)
        p.bstore("buffer_store_dwordx4", part[3][0:4], voff16, SWS, sT[i], flags="sc1", xw=[f"%stu{i}"])

def gen_k3():
    p = Prog()
    prologue(p, end="L_end_k3")
    make_srd(p, SRD[0], P_WS, size=WS_SIZE)
    names = ["l31", "h", "g1", "r4", "c4", "t0", "t1", "trc", "r16", "s16", "r8", "s8", "t2"]
    T = {n: V(32 + i) for i, n in enumerate(names)}
    lane_consts(p, T)
    sT = [S(67 + i) for i in range(6)]
    emit_b2(p, T, sT, SRD[0], SRD[1], SRD[2])
    p.flush(verbose=True)
    p.label("L_end_k3")
    p.raw("s_endpgm"); p.flush(schedule=False)
    return p
```

```python
from common import *
from k1 import Pool, lane_consts

def emit_c(p, T, sT, SWS, SWO, SWOUT, SX, SOUT):
    s_tau, s_nu = S(74), S(75)
    p.s("and_b32", s_tau, s_jj, 3); p.s("lshl_b32", sT[0], s_xcd, 2); p.s("add_u32", s_tau, s_tau, sT[0])
    p.s("lshr_b32", s_nu, s_jj, 2)
    p.s("lshl_b32", sT[0], s_wave, 20); p.s("lshl_b32", sT[1], s_nu, 7); p.s("add_u32", sT[0], sT[0], sT[1])
    make_srd(p, SWO, P_WO, off=sT[0], size=1024 * 1024)
    p.s("mul_i32", sT[2], s_wave, 176 * 1024); p.s("add_u32", sT[2], sT[2], sT[1])
    make_srd(p, SWOUT, P_WOUT, off=sT[2], size=0)
    p.s("sub_u32", SWOUT[2], 688 * 1024, sT[2])
    p.s("lshl_b32", sT[3], s_tau, 16); p.s("add_u32", sT[3], sT[3], sT[1])
    make_srd(p, SX, P_X, off=sT[3], size=64 * 1024)
    make_srd(p, SOUT, P_OUT, off=sT[3], size=0)
    p.s("sub_u32", SOUT[2], 2048 * 1024, sT[3])
    NSL = 12
    s_wL = S(76); p.s("mul_i32", s_wL, s_wave, NSL * 2048)
    s_c = [S(77), S(78), S(79)]
    for i in range(3): p.s("mov_b32", s_c[i], (i + 1) * (8192 - 1024))
    v_w = V(2); v_w2 = V(3); a_a = [V(4), V(5)]; voff16 = V(8)
    t0, t1, t2 = T["t0"], T["t1"], T["t2"]
    p.v("lshlrev_b32", voff16, 4, V(0))
    p.v("lshrrev_b32", t0, 2, T["s8"]); p.v("bfe_u32", t1, T["r8"], 1, 1); p.v("xor_b32", t0, t0, t1); p.v("lshlrev_b32", t0, 6, t0)
    p.v("and_b32", t1, 3, T["s8"]); p.v("lshl_add_u32", t0, t1, 4, t0); p.v("lshl_add_u32", v_w, T["r8"], 10, t0)
    p.v("mov_b32", v_w2, v_w)
    p.v("lshlrev_b32", t0, 10, T["h"]); p.v("lshl_add_u32", t0, T["r4"], 7, t0); p.v("add_u32", t0, t0, T["trc"]); p.v("add_u32", t0, s_wL, t0)
    p.v("lshrrev_b32", t1, 1, T["r4"])
    for tn in range(2):
        p.v("xor_b32", t2, tn, t1); p.v("lshl_add_u32", a_a[tn], t2, 6, t0)
    s_o = [S(80), S(81)]; s_u = [S(82), S(83)]
    for u in range(2):
        p.s("lshl_b32", sT[0], s_tau, 1); p.s("add_u32", sT[0], sT[0], u)
        p.s("lshl_b32", sT[1], sT[0], 8); p.s("lshl_b32", sT[2], s_wave, 6); p.s("add_u32", sT[1], sT[1], sT[2]); p.s("lshl_b32", sT[1], sT[1], 10)
        p.s("add_u32", s_o[u], sT[1], WS_O)
        p.s("mul_i32", sT[1], sT[0], 44); p.s("mul_i32", sT[2], s_wave, 11); p.s("add_u32", sT[1], sT[1], sT[2]); p.s("lshl_b32", sT[1], sT[1], 10)
        p.s("add_u32", s_u[u], sT[1], WS_U)
    CACC = lambda tn, u: A(16 * (2 * tn + u), 16)
    GACC = lambda tn, u: A(64 + 16 * (2 * tn + u), 16)
    bpool = Pool(V(128), 24, 4); apool = Pool(V(96), 8, 4)
    cnt = [0]
    def tok():
        cnt[0] += 1; return f"%crd{cnt[0]}"
    wtok = {}; wrd = {}
    g = [0]
    def dma_pair(gk, srd, vw, last):
        slot = gk % NSL
        p.s("add_u32", M0, s_wL, slot * 2048)
        xr = wrd.get(gk - NSL, []) + wrd.get(gk + 1 - NSL, [])
        for i in range(4):
            tk = f"%WO{gk}.{i}"
            p.dma(vw, srd, [0, s_c[0], s_c[1], s_c[2]][i], offset=i * 1024, xr=xr, xw=[tk])
            wtok.setdefault(gk + i // 2, []).append(tk)
        if not last: p.v("add_u32", vw, 32768, vw)
    def issue_pair(gk):
        if gk < 64: dma_pair(gk, SWO, v_w, gk == 62)
        elif gk < 76: dma_pair(gk, SWOUT, v_w2, gk == 74)
    for gk in range(0, NSL - 2, 2): issue_pair(gk)
    for gk in range(75):
        if gk % 2 == 0: issue_pair(gk + NSL - 2)
        wrd[gk] = []
        isC = gk < 64; ks = gk if isC else gk - 64
        so = s_o if isC else s_u
        bf = []
        for u in range(2):
            r = bpool.next(); p.bload("buffer_load_dwordx4", r, voff16, SWS, so[u], offset=(ks % 4) * 1024, flags="sc1"); bf.append(r)
        if ks % 4 == 3:
            for u in range(2): p.s("add_u32", so[u], so[u], 4096)
        for tn in range(2):
            r = apool.next()
            for i2 in range(2):
                tk = tok()
                i = p.ds_read("ds_read_b64_tr_b16", r[2 * i2:2 * i2 + 2], a_a[tn], offset=(gk % NSL) * 2048 + i2 * 512, xr=wtok[gk]); i.writes.append(tk); wrd[gk].append(tk)
            for u in range(2):
                acc = (CACC if isC else GACC)(tn, u)
                p.mfma(acc, r, bf[u], acc if ks else 0)
    xv = V(16, 8); vo = V(10)
    p.s("and_b32", sT[0], s_wave, 1); p.s("lshl_b32", sT[0], sT[0], 15); p.s("lshr_b32", sT[1], s_wave, 1); p.s("lshl_b32", sT[1], sT[1], 6); p.s("add_u32", sT[0], sT[0], sT[1])
    p.v("lshlrev_b32", vo, 10, T["l31"]); p.v("lshl_add_u32", vo, T["h"], 4, vo)
    for kk in range(2): p.bload("buffer_load_dwordx4", xv[4 * kk:4 * kk + 4], vo, SX, sT[0], offset=32 * kk)
    lastrd = [t for gk in range(60, 75) for t in wrd[gk]]
    p.barrier(xr=lastrd, xw=["%cfree"])
    a_w = V(9); p.s("lshl_b32", sT[2], s_wave, 15); p.v("add_u32", a_w, sT[2], voff16)
    wt = []
    for ti in range(8):
        for qd in range(4):
            tk = f"%cw{ti}{qd}"; wt.append(tk)
            p.ds_write("ds_write_b128", a_w, A(16 * ti + 4 * qd, 4), offset=ti * 4096 + qd * 1024, xr=["%cfree"], xw=[tk])
    p.barrier(xr=wt, xw=["%crdy"])
    a_r = [V(11), V(12)]
    p.s("lshl_b32", sT[3], s_wave, 12); p.v("add_u32", a_r[0], sT[3], voff16); p.v("add_u32", a_r[1], 65536, a_r[0])
    res = []
    for gi in range(2):
        part = [V(128 + 64 * gi + 16 * w, 16) for w in range(4)]
        for w in range(4):
            for q in range(4):
                p.ds_read("ds_read_b128", part[w][4 * q:4 * q + 4], a_r[w // 2], offset=(w % 2) * 32768 + gi * 16384 + q * 1024, xr=["%crdy"])
        for r in range(16):
            p.v("add_f32", part[0][r], part[0][r], part[1][r]); p.v("add_f32", part[2][r], part[2][r], part[3][r]); p.v("add_f32", part[0][r], part[0][r], part[2][r])
        res.append(part)
    sv, gv = res[0][0], res[1][0]
    tp = res[0][1]; tq = res[0][2]; outp = V(24, 8)
    for q in range(8):
        s0, s1, g0, g1 = sv[2 * q], sv[2 * q + 1], gv[2 * q], gv[2 * q + 1]
        pk, e0, e1 = tp[q], tq[2 * q], tq[2 * q + 1]
        p.v("cvt_pk_bf16_f32", pk, g0, g1); p.v("lshlrev_b32", g0, 16, pk); p.v("and_b32", g1, 0xffff0000, pk)
        p.v("mul_f32", e0, -LOG2E, g0); p.v("mul_f32", e1, -LOG2E, g1)
        p.v("exp_f32", e0, e0); p.v("exp_f32", e1, e1)
        p.v("add_f32", e0, 1.0, e0); p.v("add_f32", e1, 1.0, e1)
        p.v("rcp_f32", e0, e0); p.v("rcp_f32", e1, e1)
        p.v("mul_f32", g0, g0, e0); p.v("mul_f32", g1, g1, e1)
        p.v("cvt_pk_bf16_f32", pk, g0, g1); p.v("lshlrev_b32", g0, 16, pk); p.v("and_b32", g1, 0xffff0000, pk)
        p.v("cvt_pk_bf16_f32", pk, s0, s1); p.v("lshlrev_b32", s0, 16, pk); p.v("and_b32", s1, 0xffff0000, pk)
        p.v("mul_f32", s0, s0, g0); p.v("mul_f32", s1, s1, g1)
        p.v("cvt_pk_bf16_f32", pk, s0, s1); p.v("lshlrev_b32", s0, 16, pk); p.v("and_b32", s1, 0xffff0000, pk)
        p.v("lshlrev_b32", e0, 16, xv[q]); p.v("and_b32", e1, 0xffff0000, xv[q])
        p.v("add_f32", s0, s0, e0); p.v("add_f32", s1, s1, e1)
        p.v("cvt_pk_bf16_f32", outp[q], s0, s1)
    for kk in range(2): p.bstore("buffer_store_dwordx4", outp[4 * kk:4 * kk + 4], vo, SOUT, sT[0], offset=32 * kk)

def gen_k4():
    p = Prog()
    prologue(p, end="L_end_k4")
    make_srd(p, SRD[0], P_WS, size=WS_SIZE)
    names = ["l31", "h", "g1", "r4", "c4", "t0", "t1", "trc", "r16", "s16", "r8", "s8", "t2"]
    T = {n: V(32 + i) for i, n in enumerate(names)}
    lane_consts(p, T)
    sT = [S(67 + i) for i in range(6)]
    emit_c(p, T, sT, SRD[0], SRD[1], SRD[2], SRD[3], SRD[4])
    p.flush(verbose=True)
    p.label("L_end_k4")
    p.raw("s_endpgm"); p.flush(schedule=False)
    return p
```

```python
import sys
sys.path.insert(0, "gen")
from common import *
import k0, k1, k2, k3, k4
HEADER = open("recurrent_scan__sliding_block_cached__mixer_gmlp__prompt.s.ref").read().split("; Override launch geometry")[0]
def build(kernels, path):
    s = HEADER
    for (name, p, grid, block, lds) in kernels:
        s += f"; @launch kernel={name} grid=({grid},1,1) block=({block},1,1) lds={lds}\n"
    s += '.amdgcn_target "amdgcn-amd-amdhsa--gfx950"\n'
    seen = set()
    for (name, p, grid, block, lds) in kernels:
        if name in seen: continue
        seen.add(name)
        body = render(finalize(p.out))
        s += kernel_wrap(name, body)
    s += '.section .rodata,"a"\n'
    seen = set()
    for (name, p, grid, block, lds) in kernels:
        if name in seen: continue
        seen.add(name)
        s += ".p2align 6\n" + kd(name)
    open(path, "w").write(s)
    print("wrote", path, len(s), "bytes")
if __name__ == "__main__":
    dbg = sys.argv[1] if len(sys.argv) > 1 else None
    ks = [("k0_kernel", k0.gen_k0(), 256, 256, 0), ("k1_kernel", k1.gen_k1(dbg), 256, 256, k1.LDS_BYTES),
          ("k2_kernel", k2.gen_k2(), 256, 256, 16384), ("k3_kernel", k3.gen_k3(), 256, 256, 131072), ("k4_kernel", k4.gen_k4(), 256, 256, 131072)]
    build(ks, "out.s")
```

```python
import re, heapq
from collections import defaultdict

class R:
    __slots__ = ("f", "b", "n")
    def __init__(self, f, b, n=1):
        self.f, self.b, self.n = f, b, n
    def __str__(self):
        if self.n == 1: return f"{self.f}{self.b}"
        return f"{self.f}[{self.b}:{self.b + self.n - 1}]"
    __repr__ = __str__
    def regs(self):
        return [f"{self.f}{self.b + i}" for i in range(self.n)]
    def __getitem__(self, i):
        if isinstance(i, slice):
            st = i.start or 0; en = i.stop if i.stop is not None else self.n
            assert 0 <= st < en <= self.n, (st, en, self.n)
            return R(self.f, self.b + st, en - st)
        assert 0 <= i < self.n, (i, self.n)
        return R(self.f, self.b + i, 1)
    def sub(self, st, n): return self[st:st + n]
def V(b, n=1): return R("v", b, n)
def A(b, n=1): return R("a", b, n)
def S(b, n=1): return R("s", b, n)
class Sp:
    def __init__(self, name, names=None):
        self.name = name; self.names = names or [name]
    def __str__(self): return self.name
    def regs(self): return list(self.names)
VCC = Sp("vcc"); EXEC = Sp("exec"); M0 = Sp("m0")

def regs_of(x):
    if isinstance(x, (R, Sp)): return x.regs()
    if isinstance(x, (list, tuple)):
        o = []
        for y in x: o += regs_of(y)
        return o
    if isinstance(x, str) and x.startswith("%"):
        return [x]
    return []

def fmt(x):
    if isinstance(x, float):
        import struct
        if x in (0.0, 0.5, 1.0, 2.0, 4.0, -0.5, -1.0, -2.0, -4.0): return repr(x) if x != 0.0 else "0"
        return hex(struct.unpack("<I", struct.pack("<f", x))[0])
    if isinstance(x, int):
        if -16 <= x <= 64: return str(x)
        return hex(x & 0xffffffff)
    return str(x)

TRANS = ("v_exp_f32", "v_log_f32", "v_rcp_f32", "v_rsq_f32", "v_sqrt_f32", "v_sin_f32", "v_cos_f32", "v_rcp_iflag_f32")

class Inst:
    __slots__ = ("pace", "vm", "lg", "text", "kind", "reads", "writes", "cost", "idx", "lat", "prio", "note", "passes", "srcc", "asap", "late", "op", "wide_store", "tag", "nwait", "srcab")
    def __init__(self, text, kind, reads=(), writes=(), cost=4, lat=4, op=None):
        self.text = text; self.kind = kind
        self.reads = list(dict.fromkeys(regs_of(list(reads)))); self.writes = list(dict.fromkeys(regs_of(list(writes))))
        self.cost = cost; self.lat = lat; self.prio = 0; self.note = ""; self.passes = 0; self.srcc = []; self.srcab = []
        self.vm = None; self.lg = None; self.pace = 0
        self.asap = False; self.late = False; self.op = op or text.split()[0]; self.wide_store = False; self.tag = None; self.nwait = 1
    def __repr__(self): return self.text

LAT_DS = 140
LAT_VM = 1400
LAT_ST = 2000
LAT_HO = 2400

class Prog:
    def __init__(self):
        self.cur = []
        self.out = []
    def add(self, i):
        self.cur.append(i); return i
    def valu(self, op, dst, *srcs, mods="", xr=(), xw=(), rmw=False):
        ops = [dst] + list(srcs)
        text = f"{op} " + ", ".join(fmt(o) for o in ops) + (" " + mods if mods else "")
        base = re.sub(r"_(e32|e64|dpp|sdwa)$", "", op)
        reads = list(srcs) + list(xr); writes = [dst] + list(xw)
        if rmw or base in ("v_fmac_f32", "v_writelane_b32"): reads.append(dst)
        if base in ("v_permlane32_swap_b32", "v_permlane16_swap_b32"):
            reads.append(dst); writes += list(srcs)
        if base.startswith("v_cndmask") and len(srcs) == 2: reads.append(VCC)
        kind = "trans" if base in TRANS else "valu"
        i = Inst(text, kind, reads, writes, cost=8 if kind == "trans" else 4, lat=12 if kind == "trans" else 4, op=base)
        if "dpp" in op or "row_" in mods or "quad_perm" in mods: i.tag = "dpp"
        return self.add(i)
    def v(self, op, dst, *srcs, **k): return self.valu("v_" + op, dst, *srcs, **k)
    def vcmp(self, op, dst, a, b):
        return self.valu(op, dst, a, b)
    def salu(self, op, dst, *srcs, scc_w=None, scc_r=False):
        ops = ([dst] if dst is not None else []) + list(srcs)
        text = f"{op} " + ", ".join(fmt(o) for o in ops)
        noscc = ("s_mov_b32", "s_mov_b64", "s_movk_i32", "s_mul_i32", "s_mul_hi_u32", "s_cselect_b32", "s_cselect_b64", "s_getreg_b32", "s_setprio")
        if scc_w is None: scc_w = op not in noscc
        if op in ("s_addc_u32", "s_subb_u32", "s_cselect_b32", "s_cselect_b64"): scc_r = True
        reads = list(srcs) + (["%scc"] if scc_r else []); writes = ([dst] if dst is not None else []) + (["%scc"] if scc_w else [])
        return self.add(Inst(text.strip(), "salu", reads, writes, op=op))
    def s(self, op, dst, *srcs, **k): return self.salu("s_" + op, dst, *srcs, **k)
    def scmp(self, op, a, b): return self.salu(op, None, a, b, scc_w=True)
    def fused(self, lines, reads, writes, kind="salu"):
        i = Inst("\n    ".join(lines), kind, reads, writes, cost=4 * len(lines), lat=4 * len(lines), op=lines[-1].split()[0]); i.nwait = len(lines)
        return self.add(i)
    def sel(self, dst, cmp, a, b, x, y):
        return self.fused([f"s_cmp_{cmp} {fmt(a)}, {fmt(b)}", f"s_cselect_b32 {fmt(dst)}, {fmt(x)}, {fmt(y)}"], [a, b, x, y], [dst])
    def add64(self, d, a, b, op="add"):
        c = "addc" if op == "add" else "subb"
        return self.fused([f"s_{op}_u32 {d[0]}, {a[0]}, {fmt(b)}", f"s_{c}_u32 {d[1]}, {a[1]}, 0"], [R(a.f, a.b, 2), b], [R(d.f, d.b, 2)])
    def mfma(self, d, a, b, c, shape="32x32x16", pace=0):
        text = f"v_mfma_f32_{shape}_bf16 {d}, {a}, {b}, {fmt(c)}"
        passes = 8 if shape == "32x32x16" else 4
        i = Inst(text, "mfma", [a, b, c], [d], cost=8, lat=passes * 4 + 16, op="v_mfma")
        i.passes = passes; i.srcc = regs_of(c); i.srcab = regs_of([a, b]); i.pace = max(pace, passes * 4)
        return self.add(i)
    def ds_read(self, op, dst, addr, offset=0, xr=(), lat=None):
        text = f"{op} {dst}, {addr}" + (f" offset:{offset}" if offset else "")
        assert 0 <= offset < 65536, offset
        return self.add(Inst(text, "ds_read", [addr] + list(xr), [dst], lat=lat or LAT_DS, op=op))
    def ds_write(self, op, addr, data, offset=0, xr=(), xw=()):
        text = f"{op} {addr}, {data}" + (f" offset:{offset}" if offset else "")
        assert 0 <= offset < 65536, offset
        cost = 4
        return self.add(Inst(text, "ds_write", [addr, data] + list(xr), list(xw), cost=cost, lat=64, op=op))
    def bload(self, op, dst, voff, srd, soff=0, offset=0, flags="", xr=(), xw=(), lat=None):
        assert 0 <= offset < 4096
        text = f"{op} {dst}, {voff}, {srd}, {fmt(soff)} offen" + (f" offset:{offset}" if offset else "") + (" " + flags if flags else "")
        i = Inst(text, "vmem_load", [voff, srd, soff] + list(xr), [dst] + list(xw), lat=lat or LAT_VM, op=op); i.asap = True
        return self.add(i)
    def dma(self, voff, srd, soff=0, offset=0, flags="", xr=(), xw=(), op="buffer_load_dwordx4", lat=None):
        assert 0 <= offset < 4096
        text = f"{op} {voff}, {srd}, {fmt(soff)} offen" + (f" offset:{offset}" if offset else "") + (" " + flags if flags else "") + " lds"
        i = Inst(text, "dma", [voff, srd, soff, M0] + list(xr), list(xw), lat=lat or LAT_VM, op=op); i.asap = True
        return self.add(i)
    def bstore(self, op, data, voff, srd, soff=0, offset=0, flags="", xr=(), xw=(), lat=None):
        assert 0 <= offset < 4096
        text = f"{op} {data}, {voff}, {srd}, {fmt(soff)} offen" + (f" offset:{offset}" if offset else "") + (" " + flags if flags else "")
        i = Inst(text, "vmem_store", [data, voff, srd, soff] + list(xr), list(xw), lat=lat or LAT_ST, op=op)
        i.wide_store = op.endswith("x3") or op.endswith("x4")
        i.srcab = regs_of(data)
        return self.add(i)
    def batomic(self, op, data, voff, srd, soff=0, flags="sc1", xr=(), xw=()):
        text = f"{op} {data}, {voff}, {srd}, {fmt(soff)} offen" + (" " + flags if flags else "")
        return self.add(Inst(text, "vmem_store", [data, voff, srd, soff] + list(xr), list(xw), lat=LAT_VM, op=op))
    def sload(self, op, dst, base, off):
        text = f"{op} {dst}, {base}, {fmt(off)}"
        return self.add(Inst(text, "smem", [base], [dst], lat=200, op=op))
    def barrier(self, xr=(), xw=(), lazy=True):
        i = Inst("s_barrier", "barrier", list(xr) + ["%bar"], list(xw) + ["%bar"], cost=16, lat=4); i.late = lazy; i.asap = not lazy
        return self.add(i)
    def raw(self, text, kind="salu", reads=(), writes=(), cost=4, lat=4):
        return self.add(Inst(text, kind, reads, writes, cost=cost, lat=lat))
    def branch(self, text, reads=(), writes=()):
        i = Inst(text, "branch", list(reads) + ["%br"], list(writes) + ["%br"]); return self.add(i)
    def nop(self, n):
        i = Inst(f"s_nop {n}", "nop", cost=4 * (n + 1)); i.nwait = n + 1
        return self.add(i)
    def flush(self, schedule=True, **kw):
        lst = self.cur; self.cur = []
        if schedule and lst: lst = schedule_block(lst, **kw)
        self.out += lst
    def label(self, name):
        self.flush(schedule=False)
        self.out.append(f"{name}:")
    def text(self, s):
        self.flush(schedule=False)
        self.out.append(s)

def is_v(r): return r[0] in "va" and r[1:].isdigit()
def is_s(r): return (r[0] == "s" and r[1:].isdigit()) or r in ("vcc",)
VALU_KINDS = ("valu", "trans")
def mfma_pad(p):
    return {2: 5, 4: 8, 8: 12, 16: 20}[p]

def hazard(p, c):
    need = 0
    pw = set(p.writes); pr = set(p.reads); cr = set(c.reads); cw = set(c.writes)
    pk, ck = p.kind, c.kind
    if pk == "mfma":
        ov_r = pw & cr; ov_w = pw & cw
        if ck == "mfma":
            if pw & set(c.srcab): need = max(need, mfma_pad(p.passes))
            oc = pw & set(c.srcc)
            if oc:
                if set(c.srcc) == pw and p.passes == c.passes: pass
                else: need = max(need, {2: 4, 4: 6, 8: 10, 16: 18}[p.passes])
            elif ov_w and not oc:
                need = max(need, mfma_pad(p.passes))
        elif ck in VALU_KINDS or ck in ("vmem_store", "vmem_load", "ds_read", "ds_write", "dma"):
            if ov_r or ov_w: need = max(need, mfma_pad(p.passes))
        if ck in VALU_KINDS and (set(p.srcc) & cw): need = max(need, {2: 1, 4: 3, 8: 7, 16: 15}[p.passes])
    if pk in VALU_KINDS:
        vw = {r for r in pw if is_v(r)}; sw = {r for r in pw if is_s(r)}
        if ck == "mfma" and (vw & cr): need = max(need, 2)
        if pk == "trans" and ck == "valu" and (vw & cr): need = max(need, 1)
        if ck in VALU_KINDS:
            if c.op in ("v_permlane32_swap_b32", "v_permlane16_swap_b32") and (vw & cr): need = max(need, 2)
            if c.tag == "dpp" and (vw & cr): need = max(need, 2)
            if c.op in ("v_readfirstlane_b32", "v_readlane_b32") and (vw & cr): need = max(need, 1)
            if sw & cr:
                need = max(need, 4 if c.op in ("v_readlane_b32", "v_writelane_b32") else 2)
        if ck in ("vmem_load", "vmem_store", "dma") and (sw & cr): need = max(need, 5)
        if ck in ("salu", "branch") and (sw & cr): need = max(need, 1)
        if "exec" in pw and ck == "mfma": need = max(need, 4)
    if pk == "salu":
        if "m0" in pw and ck == "dma": need = max(need, 1)
        if "exec" in pw and ck == "mfma": need = max(need, 1)
    if pk == "vmem_store" and p.wide_store:
        dv = set(p.srcab)
        if dv & cw: need = max(need, 2)
    return need
MAX_HAZ = 20

def build_dag(lst):
    n = len(lst)
    succ = [[] for _ in range(n)]; npred = [0] * n
    lastw = {}; readers = defaultdict(list)
    last_mfma = None
    edges = set()
    raw = [[] for _ in range(n)]
    def edge(a, b, lat, israw=False):
        if a == b: return
        succ[a].append((b, lat)); npred[b] += 1
        if israw: raw[a].append(b)
    for i, ins in enumerate(lst):
        ins.idx = i
        for r in ins.reads:
            if r in lastw:
                p = lst[lastw[r]]
                lat = p.lat
                if p.kind == "mfma" and ins.kind == "mfma" and r in ins.srcc and set(ins.srcc) == set(p.writes): lat = p.passes * 4
                if p.kind in ("barrier", "branch", "label") : lat = 0
                if ins.kind in ("branch", "label") and p.kind == "mfma": lat = 0
                if r.startswith("%") and p.kind in ("salu", "valu"): lat = 4
                if r in ("%arr", "%mk"): lat = 0
                edge(lastw[r], i, lat, israw=(r not in ins.writes or not r.startswith("%")))
        for r in ins.writes:
            if r in lastw:
                p = lst[lastw[r]]
                lat = p.lat if p.kind in ("ds_read", "vmem_load", "mfma", "smem", "dma", "vmem_store") else 0
                if p.kind == "mfma" and ins.kind == "mfma" and r in ins.srcc: lat = p.passes * 4
                if ins.kind in ("branch", "label") and p.kind == "mfma": lat = 0
                if r in ("%arr", "%mk"): lat = 0
                edge(lastw[r], i, lat)
            for q in readers[r]:
                edge(q, i, 0)
        for r in ins.reads: readers[r].append(i)
        for r in ins.writes:
            lastw[r] = i; readers[r] = []
        if ins.kind == "mfma":
            if last_mfma is not None: edge(last_mfma, i, lst[last_mfma].pace)
            last_mfma = i
    build_dag.raw = raw
    return succ, npred

def schedule_block(lst, verbose=False, t0=0, asap_boost=1000000, lazy_margin=330, slack=0, lds_done=200, vm_space=64, ds_scale=4):
    n = len(lst)
    if not any("%scc" in i.reads for i in lst):
        for i in lst:
            if "%scc" in i.writes: i.writes = [w for w in i.writes if w != "%scc"]
    succ, npred = build_dag(lst)
    height = [0] * n
    for i in range(n - 1, -1, -1):
        h = lst[i].cost
        for (j, lat) in succ[i]:
            h = max(h, height[j] + max(lat, lst[i].cost if lst[i].kind != "mfma" else 0))
        height[i] = h
    ready_t = [0] * n
    npred = list(npred)
    ready = []
    boosted = [False] * n
    for i in range(n - 1, -1, -1):
        ins = lst[i]
        if ins.asap: boosted[i] = True
        elif ins.kind not in ("mfma", "barrier", "branch", "ds_read"):
            boosted[i] = any(boosted[j] for j in build_dag.raw[i])
    def key(i):
        ins = lst[i]
        return (-(height[i] + (asap_boost if boosted[i] else 0) + ins.prio), i)
    for i in range(n):
        if npred[i] == 0: ready.append((key(i), i))
    out = []
    t = t0
    mfma_free = t0
    mf_idx = [i for i in range(n) if lst[i].kind == "mfma"]
    mf_ptr = 0
    done = [False] * n
    recent = []
    gap_has_bar = False
    stall_total = 0
    mtimes = []
    lgq = []; vmq = []
    res_free = {"vm": t0, "ds": t0}
    def res_of(ins):
        if ins.kind in ("vmem_load", "vmem_store", "dma"):
            w = vm_space if ("x4" in ins.op) else (vm_space // 2 if "x2" in ins.op else vm_space // 4)
            return "vm", w
        if ins.kind == "ds_read":
            return "ds", ds_scale * (4 if "b128" in ins.op else 2)
        if ins.kind == "ds_write":
            return "ds", ds_scale * (8 if "b128" in ins.op else 2)
        return None, 0
    def wait_needed(ins):
        tr = (set(ins.reads) | set(ins.writes)) - {"%arr", "%mk"}
        nv = None; nl = None
        for k, (q, _) in enumerate(vmq):
            if tr.intersection(q.writes): nv = k
        for k, (q, _) in enumerate(lgq):
            if tr.intersection(q.writes): nl = k
        return nv, nl
    def emit_wait(ins):
        nonlocal t, lgq, vmq
        nv, nl = wait_needed(ins)
        if nv is None and nl is None: return
        parts = []; w = Inst("s_waitcnt", "wait"); w.vm = None; w.lg = None
        if nv is not None:
            cnt = len(vmq) - 1 - nv; vmq = vmq[nv + 1:]; parts.append(f"vmcnt({cnt})"); w.vm = cnt
        if nl is not None:
            while nl + 1 < len(lgq) and lgq[nl + 1][1] + lds_done <= t: nl += 1
            cnt = min(15, len(lgq) - 1 - nl); lgq = lgq[len(lgq) - cnt:] if cnt else []
            parts.append(f"lgkmcnt({cnt})"); w.lg = cnt
        w.text = "s_waitcnt " + " ".join(parts)
        out.append(w); recent.append(w); t += 4
    def haz_ok(c):
        d = 0
        for p in reversed(recent):
            need = hazard(p, c)
            if need > d: return False
            d += p.nwait
            if d >= MAX_HAZ: break
        return True
    def issue(i):
        nonlocal t, mfma_free, gap_has_bar
        ins = lst[i]
        ready.remove((key(i), i))
        emit_wait(ins)
        if ins.kind in ("vmem_load", "vmem_store", "dma") and len(vmq) >= 60:
            w = Inst("s_waitcnt vmcnt(52)", "wait"); w.vm = 52; w.lg = None
            del vmq[:len(vmq) - 52]
            out.append(w); recent.append(w); t += 4
        out.append(ins); recent.append(ins)
        rk, rw = res_of(ins)
        if rk: res_free[rk] = t + rw
        if ins.kind in ("vmem_load", "vmem_store", "dma"): vmq.append((ins, t))
        elif ins.kind in ("ds_read", "ds_write"): lgq.append((ins, t))
        if len(recent) > MAX_HAZ + 4: recent.pop(0)
        done[i] = True
        if ins.kind == "mfma":
            mfma_free = t + ins.pace; gap_has_bar = False; mtimes.append(t)
        if ins.kind == "barrier": gap_has_bar = True
        t_issue = t
        t += ins.cost
        for (j, lat) in succ[i]:
            ready_t[j] = max(ready_t[j], t_issue + lat)
            npred[j] -= 1
            if npred[j] == 0: ready.append((key(j), j))
    nleft = n
    while nleft:
        while mf_ptr < len(mf_idx) and done[mf_idx[mf_ptr]]: mf_ptr += 1
        nm = mf_idx[mf_ptr] if mf_ptr < len(mf_idx) else None
        nm_dep = nm is not None and npred[nm] == 0
        nm_t = max(mfma_free, ready_t[nm]) if nm_dep else None
        if nm_dep:
            nvw, nlw = wait_needed(lst[nm])
            nm_w = 4 if (nvw is not None or nlw is not None) else 0
        if nm_dep and nm_t <= t + nm_w and haz_ok(lst[nm]):
            issue(nm); nleft -= 1
            continue
        best = None
        res_blocked = []
        just_after_mfma = bool(out) and out[-1].kind == "mfma"
        for (k, i) in sorted(ready):
            ins = lst[i]
            if ins.kind == "mfma" or ready_t[i] > t: continue
            rk, rw = res_of(ins)
            if rk and res_free[rk] > t: res_blocked.append(res_free[rk]); continue
            if ins.late and nm is not None:
                if height[i] + lazy_margin < height[nm]: continue
            if ins.kind == "barrier" and nm is not None and nm_dep and not just_after_mfma and nm_t == mfma_free: continue
            if nm_dep:
                room = nm_t - t - slack - nm_w
                nvw, nlw = wait_needed(ins)
                need = ins.cost + (4 if (nvw is not None or nlw is not None) else 0)
                if nm_t > t and need > room: continue
            if not haz_ok(ins): continue
            best = i; break
        if best is not None:
            issue(best); nleft -= 1
            continue
        cand_t = [ready_t[i] for (k, i) in ready if ready_t[i] > t] + res_blocked
        if nm_t is not None and nm_t > t: cand_t.append(nm_t)
        if cand_t:
            nt = min(cand_t)
            if nm_t is None or nt > mfma_free: stall_total += nt - max(t, mfma_free if nm is not None else t)
            t = nt
            continue
        lazy = [i for (k, i) in sorted(ready) if lst[i].late and ready_t[i] <= t and haz_ok(lst[i])]
        if lazy:
            issue(lazy[0]); nleft -= 1
            continue
        nop = Inst("s_nop 0", "nop"); out.append(nop); recent.append(nop); t += 4
    if verbose and mtimes:
        gaps = [(k, mtimes[k + 1] - mtimes[k]) for k in range(len(mtimes) - 1)]
        big = [(k, g) for k, g in gaps if g > 32]
        print(f"  first mfma at {mtimes[0] - t0}, last at {mtimes[-1] - t0}, tail {t - mtimes[-1]}; gaps>32: {len(big)} total excess {sum(g - 32 for k, g in big)}: {big[:40]}")
    if verbose: print(f"  scheduled {n} instrs, {len(mf_idx)} mfma, est {t - t0} cycles ({(t - t0) / max(1, len(mf_idx)):.2f}/mfma)")
    return out

def finalize(items, verbose=False):
    out = []
    vmq = []
    lgq = []
    smem_out = []
    recent = []
    def emit(ins):
        out.append(ins); recent.append(ins)
        if len(recent) > MAX_HAZ + 8: recent.pop(0)
    nw = 0
    for it in items:
        if isinstance(it, str):
            out.append(it); continue
        ins = it
        if ins.kind == "wait" and (ins.vm is not None or ins.lg is not None):
            if ins.vm is not None and len(vmq) > ins.vm: vmq = vmq[len(vmq) - ins.vm:] if ins.vm else []
            if ins.lg is not None:
                if len(lgq) > ins.lg: lgq = lgq[len(lgq) - ins.lg:] if ins.lg else []
                if ins.lg == 0: smem_out = []
            emit(ins); continue
        touched_r = set(ins.reads) - {"%arr", "%mk"}; touched_w = set(ins.writes) - {"%arr", "%mk"}
        need_vm = None; need_lg = None
        for k, p in enumerate(vmq):
            pw = set(p.writes)
            if (pw & touched_r) or (pw & touched_w): need_vm = k
        for k, p in enumerate(lgq):
            pw = set(p.writes)
            if (pw & touched_r) or (pw & touched_w): need_lg = k
            elif ins.kind == "barrier" and "%lds_all" in touched_r: need_lg = k
        smem_need = any((set(p.writes) & (touched_r | touched_w)) for p in smem_out)
        parts = []
        if need_vm is not None:
            cnt = len(vmq) - 1 - need_vm
            assert cnt <= 63, cnt
            parts.append(f"vmcnt({cnt})"); vmq = vmq[need_vm + 1:]
        if smem_need:
            parts.append("lgkmcnt(0)"); lgq = []; smem_out = []
        elif need_lg is not None:
            cnt = len(lgq) - 1 - need_lg
            if cnt > 15: cnt = 15
            lgq = lgq[len(lgq) - cnt:] if cnt else []
            if cnt == 0: smem_out = []
            parts.append(f"lgkmcnt({cnt})")
        if parts:
            w = Inst("s_waitcnt " + " ".join(parts), "wait"); emit(w); nw += 1
        d = 0; need_nop = 0
        for p in reversed(recent):
            h = hazard(p, ins)
            if h > d: need_nop = max(need_nop, h - d)
            d += p.nwait
            if d >= MAX_HAZ: break
        while need_nop > 0:
            k = min(need_nop, 16)
            nop = Inst(f"s_nop {k - 1}", "nop"); nop.nwait = k; emit(nop); need_nop -= k
        emit(ins)
        if ins.kind in ("vmem_load", "vmem_store", "dma"):
            vmq.append(ins)
            if len(vmq) >= 62:
                w = Inst("s_waitcnt vmcnt(52)", "wait"); emit(w); vmq = vmq[len(vmq) - 52:]
        elif ins.kind in ("ds_read", "ds_write"): lgq.append(ins)
        elif ins.kind == "smem": smem_out.append(ins)
        elif ins.kind == "waitlg":
            lgq = []; smem_out = []
        elif ins.kind == "waitall":
            vmq = []; lgq = []; smem_out = []
    return out

def render(items):
    lines = []
    for it in items:
        if isinstance(it, str): lines.append(it)
        else: lines.append("    " + it.text)
    return "\n".join(lines) + "\n"
```

```python
from asmgen import *
import math
NROW, DM, NH, DH, NK, KOFF = 2048, 512, 32, 128, 512, 1536
FF, FH = 1376, 688
WS_XSTAT = 0x0
WS_Z2STAT = 0x10000
WS_FLAG = 0x80000
WS_Z1F = 0x100000
WS_Z2R = 0x400000
WS_Z2N = 0x700000
WS_U = 0xA00000
WS_O = 0x1000000
WS_PART = 0x2000000
WS_DBG = 0x3000000
WS_SIZE = 268435456
P_X, P_K, P_V, P_WQ, P_WO, P_BX, P_WIN, P_WSP = [S(36 + 2 * i, 2) for i in range(8)]
P_BSP, P_WOUT, P_OUT, P_DBG = [S(52 + 2 * i, 2) for i in range(4)]
P_WS = S(60, 2)
SRD = [S(4 * (i + 1), 4) for i in range(8)]
s_wg = S(2)
s_wave, s_xcd, s_jj, s_head, s_qt = S(62), S(63), S(64), S(65), S(66)
LOG2E = 1.4426950408889634

def prologue(p, nwg=256, end="L_end"):
    p.scmp("s_cmp_ge_u32", s_wg, nwg)
    p.branch(f"s_cbranch_scc1 {end}", reads=["%scc"])
    p.flush(schedule=False)
    p.sload("s_load_dwordx16", S(36, 16), S(0, 2), 0)
    p.sload("s_load_dwordx8", S(52, 8), S(0, 2), 64)
    p.sload("s_load_dwordx2", S(60, 2), S(0, 2), 96)
    p.v("lshrrev_b32", V(1), 6, V(0))
    p.v("and_b32", V(0), 63, V(0))
    p.v("readfirstlane_b32", s_wave, V(1))
    p.s("and_b32", s_xcd, s_wg, 7)
    p.s("lshr_b32", s_jj, s_wg, 3)
    p.s("and_b32", S(67), s_jj, 3)
    p.s("lshl_b32", s_head, s_xcd, 2)
    p.s("add_u32", s_head, s_head, S(67))
    p.s("lshr_b32", s_qt, s_jj, 2)

def make_srd(p, srd, ptr, off=None, size=0, off_imm=0):
    src = ptr
    if off is not None:
        p.add64(srd, src, off); src = srd
    if off_imm > 0: p.add64(srd, src, off_imm); src = srd
    elif off_imm < 0: p.add64(srd, src, -off_imm, op="sub"); src = srd
    if src is ptr: p.s("mov_b32", srd[0], ptr[0])
    p.s("and_b32", srd[1], src[1], 0xffff)
    p.s("mov_b32", srd[2], size)
    p.s("mov_b32", srd[3], 0x20000)

def allreduce_add(p, v, t):
    for sh in (8, 4, 2, 1):
        p.valu("v_add_f32_dpp", v, v, v, mods=f"row_ror:{sh} row_mask:0xf bank_mask:0xf")
    p.v("mov_b32", t, v)
    p.valu("v_permlane16_swap_b32", v, t)
    p.v("add_f32", v, v, t)
    p.v("mov_b32", t, v)
    p.valu("v_permlane32_swap_b32", v, t)
    p.v("add_f32", v, v, t)

def halfswap_op(p, op, v, t):
    p.v("mov_b32", t, v)
    p.valu("v_permlane32_swap_b32", v, t)
    p.v(op, v, v, t)

def round_bf16(p, dst, src):
    p.v("cvt_pk_bf16_f32", dst, src, src)
    p.v("and_b32", dst, 0xffff0000, dst)

def kernel_wrap(name, body, vgpr=512, accum=256, sgpr=102):
    return f""".text
.globl {name}
.p2align 8
.type {name},@function
{name}:
{body}
.p2align 6
"""
def kd(name, vgpr=512, accum=256, sgpr=102):
    return f""".amdhsa_kernel {name}
  .amdhsa_next_free_vgpr {vgpr}
  .amdhsa_next_free_sgpr {sgpr}
  .amdhsa_accum_offset {accum}
  .amdhsa_group_segment_fixed_size 0
  .amdhsa_kernarg_size 104
  .amdhsa_user_sgpr_count 2
  .amdhsa_user_sgpr_kernarg_segment_ptr 1
  .amdhsa_system_sgpr_workgroup_id_x 1
  .amdhsa_float_denorm_mode_32 3
.end_amdhsa_kernel
"""

STAMPS = {"on": False, "n": 0}
def stamp(p, name=""):
    if not STAMPS["on"]: return
    k = STAMPS["n"]; STAMPS["n"] += 1
    p.flush(schedule=False)
    p.raw("s_memtime s[100:101]", kind="smem", writes=[S(100, 2)])
    p.raw("s_waitcnt lgkmcnt(0)", kind="waitlg")
    p.raw(f"v_writelane_b32 v63, s100, {k}", kind="valu", reads=[S(100)], writes=[V(63)])
    p.raw("s_memrealtime s[100:101]", kind="smem", writes=[S(100, 2)])
    p.raw("s_waitcnt lgkmcnt(0)", kind="waitlg")
    p.raw(f"v_writelane_b32 v63, s100, {32 + k}", kind="valu", reads=[S(100)], writes=[V(63)])
    p.flush(schedule=False)
    STAMPS.setdefault("names", []).append(name)
def stamp_dump(p, srd, kid):
    if not STAMPS["on"]: return
    p.flush(schedule=False)
    p.s("lshl_b32", S(98), s_wg, 2); p.s("add_u32", S(98), S(98), s_wave); p.s("lshl_b32", S(98), S(98), 8)
    p.s("add_u32", S(98), S(98), WS_DBG + 0x2000000 + kid * 0x100000)
    p.v("lshlrev_b32", V(62), 2, V(0))
    p.bstore("buffer_store_dword", V(63), V(62), srd, S(98))
    p.flush(schedule=False)
    STAMPS["n"] = 0

OPT = {"sc1": "sc1"}
```

```python
from common import *

XR = 0
WR = 98304
MISC = 159744
LDS_BYTES = 163840
QSCALE = LOG2E / math.sqrt(128.0)
THRESH = 8.0

class Pool:
    def __init__(self, base, n, width):
        self.base, self.n, self.w, self.i = base, n, width, 0
    def next(self):
        r = R(self.base.f, self.base.b + self.i * self.w, self.w); self.i = (self.i + 1) % self.n
        return r

def lane_consts(p, T):
    l = V(0)
    p.v("and_b32", T["l31"], 31, l)
    p.v("lshrrev_b32", T["h"], 5, l)
    p.v("bfe_u32", T["g1"], l, 4, 1)
    p.v("bfe_u32", T["r4"], l, 2, 2)
    p.v("and_b32", T["c4"], 3, l)
    p.v("and_b32", T["t0"], 1, T["c4"])
    p.v("lshlrev_b32", T["t0"], 1, T["t0"])
    p.v("lshrrev_b32", T["t1"], 1, T["c4"])
    p.v("or_b32", T["t0"], T["t0"], T["t1"])
    p.v("lshlrev_b32", T["t0"], 3, T["t0"])
    p.v("lshl_add_u32", T["trc"], T["g1"], 5, T["t0"])
    p.v("lshrrev_b32", T["r16"], 4, l)
    p.v("and_b32", T["s16"], 15, l)
    p.v("lshrrev_b32", T["r8"], 3, l)
    p.v("and_b32", T["s8"], 7, l)

def gen_k1(dbg=None):
    p = Prog()
    if OPT.get("nodma1"):
        real = p.dma; cnt = [0]
        def fake(voff, srd, soff=0, offset=0, flags="", xr=(), xw=(), **k):
            cnt[0] += 1
            if cnt[0] <= 33: return real(voff, srd, soff, offset, flags, xr, xw, **k)
            return p.raw("s_nop 0", kind="salu", reads=list(xr), writes=list(xw))
        p.dma = fake
    if OPT.get("nobar1"):
        def fakeb(xr=(), xw=()): return p.raw("s_nop 0", kind="salu", reads=list(xr), writes=list(xw))
        p.barrier = fakeb
    prologue(p, end="L_end_k1")
    p.flush(); stamp(p, "start")
    SX, SWQ, SWIN, SK, SV, SWS = SRD[0], SRD[1], SRD[2], SRD[3], SRD[4], SRD[5]
    sT = [S(67 + i) for i in range(6)]
    s_wX, s_wW, s_wKV = S(74), S(75), S(76)
    s_wqoff, s_winoff = S(77), S(78)
    s_c1, s_c2, s_c3 = S(79), S(80), S(81)
    s_colA, s_colB = S(82), S(83)
    s_tA, s_tB = S(84), S(85)
    s_kv = [S(86), S(87)]
    p.s("lshl_b32", sT[0], s_qt, 18)
    make_srd(p, SX, P_X, off=sT[0], size=256 * 1024)
    p.s("lshl_b32", sT[1], s_head, 8)
    make_srd(p, SWQ, P_WQ, off=sT[1], size=512 * 8192 - 31 * 256)
    make_srd(p, SWIN, P_WIN, off_imm=-2048, size=512 * 2752 + 2048)
    p.s("lshl_b32", sT[2], s_head, 19)
    p.s("add_u32", sT[2], sT[2], KOFF * 256)
    make_srd(p, SK, P_K, off=sT[2], size=NK * 256)
    make_srd(p, SV, P_V, off=sT[2], size=NK * 256)
    make_srd(p, SWS, P_WS, size=WS_SIZE)
    p.s("add_u32", sT[3], s_head, 22)
    p.s("sub_u32", sT[4], s_head, 22)
    p.scmp("s_cmp_lt_u32", s_head, 22)
    p.s("cselect_b32", s_tA, sT[3], sT[4])
    p.s("add_u32", sT[3], s_head, 10)
    p.scmp("s_cmp_lt_u32", s_head, 12)
    p.s("cselect_b32", s_tB, sT[3], 44)
    for (st, sc) in ((s_tA, s_colA), (s_tB, s_colB)):
        p.s("lshl_b32", sT[3], st, 5)
        p.s("sub_u32", sT[4], sT[3], 16)
        p.scmp("s_cmp_lt_u32", st, 22)
        p.s("cselect_b32", sc, sT[3], sT[4])
        p.scmp("s_cmp_lt_u32", st, 44)
        p.s("cselect_b32", sc, sc, 0)
        p.s("lshl_b32", sc, sc, 1)
    p.s("mul_i32", s_wX, s_wave, 24576)
    p.s("mul_i32", s_wW, s_wave, 3072)
    p.s("add_u32", s_wW, s_wW, WR)
    p.s("lshl_b32", s_wKV, s_wave, 11)
    p.s("mov_b32", s_wqoff, 0)
    p.s("mov_b32", s_winoff, 0)
    p.s("mov_b32", s_c1, 14336); p.s("mov_b32", s_c2, 32768); p.s("mov_b32", s_c3, 47104)
    names = ["l31", "h", "g1", "r4", "c4", "t0", "t1", "trc", "r16", "s16", "r8", "s8", "t2", "t3", "w"]
    T = {n: V(128 + i) for i, n in enumerate(names)}
    lane_consts(p, T)
    p.v("mov_b32", T["w"], s_wave)
    v_x = [V(2), V(3)]; v_wq = [V(4), V(5)]; v_win = V(6)
    a_x = [V(8 + j) for j in range(4)]; a_wq = [V(12 + t) for t in range(4)]; a_win = [V(16), V(17)]
    a_csq, a_csw = V(18), V(19)
    v_k = [V(20), V(21)]; v_v = V(22)
    a_k = [V(24 + k) for k in range(8)]; a_v = [V(32 + t) for t in range(4)]
    t0, t1, t2, t3 = T["t0"], T["t1"], T["t2"], T["t3"]
    p.v("lshlrev_b32", t0, 6, T["w"]); p.v("add_u32", t0, t0, T["r8"]); p.v("lshlrev_b32", t0, 10, t0)
    p.v("lshrrev_b32", t1, 1, T["r8"])
    p.v("xor_b32", t2, T["s8"], t1); p.v("lshl_add_u32", v_x[0], t2, 4, t0)
    p.v("or_b32", t1, 4, t1); p.v("xor_b32", t2, T["s8"], t1); p.v("lshl_add_u32", v_x[1], t2, 4, t0)
    p.v("add_u32", v_x[1], 8192 - 1024, v_x[1])
    p.v("lshlrev_b32", t0, 3, T["w"]); p.v("add_u32", t0, t0, T["r16"])
    p.v("lshlrev_b32", t1, 13, t0)
    p.v("lshrrev_b32", t2, 2, T["s16"]); p.v("xor_b32", t2, t2, T["r16"]); p.v("lshlrev_b32", t2, 6, t2)
    p.v("and_b32", t3, 3, T["s16"]); p.v("lshl_add_u32", t2, t3, 4, t2)
    p.v("add_u32", v_wq[0], t1, t2); p.v("add_u32", v_wq[1], 32768 - 1024, v_wq[0])
    p.v("lshl_add_u32", v_v, t0, 8, t2)
    p.v("and_b32", t1, 15, t0); p.v("xor_b32", t1, T["s16"], t1); p.v("lshlrev_b32", t1, 4, t1); p.v("lshl_add_u32", v_k[0], t0, 8, t1)
    p.v("add_u32", t0, 4, t0)
    p.v("and_b32", t1, 15, t0); p.v("xor_b32", t1, T["s16"], t1); p.v("lshlrev_b32", t1, 4, t1); p.v("lshl_add_u32", v_k[1], t0, 8, t1)
    p.v("subrev_u32", v_k[1], 1024, v_k[1])
    p.v("lshlrev_b32", t0, 3, T["w"]); p.v("add_u32", t0, t0, T["r8"])
    p.s("mov_b32", sT[5], 2752)
    p.v("mul_lo_u32", t0, t0, sT[5])
    p.v("lshrrev_b32", t1, 2, T["s8"]); p.v("bfe_u32", t2, T["r8"], 1, 1); p.v("xor_b32", t1, t1, t2)
    p.valu("v_cmp_eq_u32", VCC, 0, t1)
    p.v("mov_b32", t2, s_colB); p.v("mov_b32", t3, s_colA)
    p.valu("v_cndmask_b32", t2, t2, t3)
    p.v("add_u32", t0, t0, t2)
    p.v("and_b32", t3, 3, T["s8"]); p.v("lshl_add_u32", v_win, t3, 4, t0)
    p.v("bfe_u32", t0, T["l31"], 1, 3); p.v("xor_b32", t0, t0, T["h"]); p.v("lshlrev_b32", t0, 4, t0)
    p.v("lshl_add_u32", t0, T["l31"], 7, t0); p.v("add_u32", t0, s_wX, t0)
    for j in range(4): p.v("xor_b32", a_x[j], j << 5, t0)
    p.s("mov_b32", sT[5], 3072)
    p.v("mul_lo_u32", t0, T["h"], sT[5]); p.v("add_u32", t0, WR, t0); p.v("add_u32", t0, t0, T["trc"])
    p.v("lshl_add_u32", t1, T["r4"], 8, t0)
    for t in range(4):
        p.v("xor_b32", t2, t, T["r4"]); p.v("lshl_add_u32", a_wq[t], t2, 6, t1)
    p.v("xor_b32", t2, T["w"], T["r4"]); p.v("lshl_add_u32", a_csq, t2, 6, t1)
    p.v("lshl_add_u32", t1, T["r4"], 7, t0); p.v("add_u32", t1, 2048, t1)
    p.v("lshrrev_b32", t3, 1, T["r4"])
    for tau in range(2):
        p.v("xor_b32", t2, tau, t3); p.v("lshl_add_u32", a_win[tau], t2, 6, t1)
    p.v("and_b32", t2, 1, T["w"]); p.v("xor_b32", t2, t2, t3); p.v("lshl_add_u32", a_csw, t2, 6, t1)
    p.v("lshrrev_b32", t2, 1, T["w"]); p.s("mov_b32", sT[5], 6144); p.v("mul_lo_u32", t2, t2, sT[5]); p.v("add_u32", a_csw, a_csw, t2)
    p.v("and_b32", t0, 0x13, T["l31"]); p.v("bfe_u32", t1, T["l31"], 2, 1); p.v("lshl_or_b32", t0, t1, 3, t0)
    p.v("bfe_u32", t1, T["l31"], 3, 1); p.v("lshl_or_b32", t0, t1, 2, t0)
    p.v("and_b32", t1, 15, t0); p.v("xor_b32", t1, t1, T["h"]); p.v("lshlrev_b32", t1, 4, t1); p.v("lshl_add_u32", t1, t0, 8, t1)
    for kk in range(8): p.v("xor_b32", a_k[kk], kk << 5, t1)
    p.v("lshl_add_u32", t0, T["h"], 3, T["r4"]); p.v("lshlrev_b32", t0, 8, t0); p.v("add_u32", t0, t0, T["trc"]); p.v("add_u32", t0, 65536, t0)
    for t in range(4):
        p.v("xor_b32", t2, t, T["r4"]); p.v("lshl_add_u32", a_v[t], t2, 6, t0)
    xst = [V(36, 2), V(38, 2)]
    p.s("lshl_b32", sT[3], s_qt, 8); p.s("lshl_b32", sT[4], s_wave, 6); p.s("add_u32", sT[3], sT[3], sT[4]); p.s("lshl_b32", sT[3], sT[3], 3)
    p.v("lshlrev_b32", t0, 3, T["l31"])
    for u in range(2):
        p.bload("buffer_load_dwordx2", xst[u], t0, SWS, sT[3], offset=WS_XSTAT + 256 * u, flags="sc1")
    v_l31 = V(40); v_h = V(41)
    p.v("mov_b32", v_l31, T["l31"]); p.v("mov_b32", v_h, T["h"])
    p.flush(); stamp(p, "prologue done")

    QACC = lambda u, t: V(128 + 16 * (4 * u + t), 16)
    BACC = lambda tau, u: A(128 + 16 * (2 * tau + u), 16)
    xpool = Pool(A(192), 8, 4)
    wpool = Pool(V(80), 12, 4)
    cspool = Pool(V(64), 3, 4)
    cs_q, cs_w = V(42), V(43)
    ctmp = [V(76), V(77), V(78), V(79)]
    p.v("mov_b32", cs_q, 0); p.v("mov_b32", cs_w, 0)
    xtok = {}; wtok = {}; xrd = {}; wrd = {}
    def dma_x(c):
        slot = c % 3
        toks = []
        for i in range(8):
            if i % 4 == 0: p.s("add_u32", M0, s_wX, slot * 8192 + (i // 4) * 4096)
            soff = [0, 0, s_c1, s_c1, s_c2, s_c2, s_c3, s_c3][i]
            tok = f"%X{c}.{i}"
            p.dma(v_x[i & 1], SX, soff, offset=(i % 4) * 1024, xr=xrd.get(c - 3, []), xw=[tok]); toks.append(tok)
        xtok[c] = toks
        if c < 7:
            p.v("add_u32", v_x[0], 128, v_x[0]); p.v("add_u32", v_x[1], 128, v_x[1])
    def dma_w(hc, xr):
        slot = hc % 5
        p.s("add_u32", M0, s_wW, slot * 12288)
        toks = [f"%W{hc}.{i}" for i in range(3)]
        p.dma(v_wq[0], SWQ, s_wqoff, offset=0, xr=xr, xw=[toks[0]])
        p.dma(v_wq[1], SWQ, s_wqoff, offset=1024, xr=xr, xw=[toks[1]])
        p.dma(v_win, SWIN, s_winoff, offset=2048, xr=xr, xw=[toks[2]])
        wtok[hc] = toks
        if hc < 15:
            p.s("add_u32", s_wqoff, s_wqoff, 32 * 8192); p.s("add_u32", s_winoff, s_winoff, 32 * 2752)
    KP = [2, 5, 0, 3, 6, 1, 4, 7]; VP = [8, 11, 14, 15, 9, 10, 12, 13]
    page_free = {}
    ktok = {}; vtok = {}; krd = {}; vrd = {}
    def dma_kv(which, j):
        page = (KP if which == "K" else VP)[j % 8]
        xr = page_free[page]
        p.s("add_u32", M0, s_wKV, page * 8192)
        so = s_kv[0 if which == "K" else 1]
        p.s("mov_b32", so, j * 8192)
        toks = [f"%{which}{j}.0", f"%{which}{j}.1"]
        if which == "K":
            p.dma(v_k[0], SK, so, offset=0, xr=xr, xw=[toks[0]]); p.dma(v_k[1], SK, so, offset=1024, xr=xr, xw=[toks[1]])
            ktok[j] = toks
        else:
            p.dma(v_v, SV, so, offset=0, xr=xr, xw=[toks[0]]); p.dma(v_v, SV, so, offset=1024, xr=xr, xw=[toks[1]])
            vtok[j] = toks
    dma_x(0); dma_w(0, []); dma_w(1, []); dma_x(1); dma_w(2, []); dma_x(2)
    p.flush(vm_space=4)
    nfine = [0]
    def fine(tk):
        k = nfine[0]; nfine[0] += 1
        i = p.raw(f"s_memtime s[{36 + 2 * k}:{37 + 2 * k}]", kind="salu", reads=[tk], writes=[S(36 + 2 * k, 2)]); i.asap = True
    nrd = [0]
    def tok():
        nrd[0] += 1; return f"%rd{nrd[0]}"
    for hc in range(16):
        xr = list(wtok[hc]) + wrd.get(hc - 2, [])
        xw = [f"%Wrdy{hc}", f"%Wfree{hc - 2}"]
        if hc == 13: xr += xrd[5]; xw.append("%Xfree5")
        if hc == 15: xr += xrd[6]; xw.append("%Xfree6")
        bi = p.barrier(xr=xr, xw=xw + [f"%tb{hc}"])
        if OPT.get("fine") and hc in (0, 3, 6, 9, 12, 15): fine(f"%tb{hc}")
        if hc + 3 < 16: dma_w(hc + 3, [f"%Wfree{hc - 2}"])
        if hc % 2 == 0 and hc // 2 + 2 < 8 and hc // 2 >= 1: dma_x(hc // 2 + 2)
        if hc == 13:
            for pg in (2, 5, 8, 11): page_free[pg] = ["%Xfree5"]
            page_free[14] = ["%Wfree11"]
            dma_kv("K", 0); dma_kv("K", 1); dma_kv("V", 0)
        if hc == 14:
            page_free[15] = ["%Wfree12"]
            dma_kv("V", 1); dma_kv("V", 2)
        if hc == 15:
            for pg in (0, 3, 6, 9): page_free[pg] = ["%Xfree6"]
            dma_kv("K", 2); dma_kv("K", 3)
        wrd[hc] = []
        slot = hc % 5
        for kk in range(2):
            ks = 2 * hc + kk; c = ks // 4; j = ks % 4
            xrd.setdefault(c, [])
            xf = []
            for u in range(2):
                r = xpool.next(); tk = tok()
                i = p.ds_read("ds_read_b128", r, a_x[j], offset=(c % 3) * 8192 + u * 4096, xr=xtok[c][4 * u:4 * u + 4]); i.writes.append(tk); xrd[c].append(tk)
                xf.append(r)
            def trfrag(pool, addr, base, step, lst):
                r = pool.next()
                for i2 in range(2):
                    tk = tok()
                    i = p.ds_read("ds_read_b64_tr_b16", r[2 * i2:2 * i2 + 2], addr, offset=base + i2 * step, xr=[f"%Wrdy{hc}"]); i.writes.append(tk); lst.append(tk)
                return r
            base = slot * 12288 + kk * 6144
            for t in range(4):
                wf = trfrag(wpool, a_wq[t], base, 1024, wrd[hc])
                for u in range(2): p.mfma(QACC(u, t), wf, xf[u], QACC(u, t) if ks else 0)
            for tau in range(2):
                wf = trfrag(wpool, a_win[tau], base, 512, wrd[hc])
                for u in range(2): p.mfma(BACC(tau, u), wf, xf[u], BACC(tau, u) if ks else 0)
            def colsum(fr, acc):
                for q in range(4):
                    p.v("lshlrev_b32", ctmp[0], 16, fr[q]); p.v("add_f32", acc, acc, ctmp[0])
                    p.v("and_b32", ctmp[1], 0xffff0000, fr[q]); p.v("add_f32", acc, acc, ctmp[1])
            if not OPT.get("nocs"):
                colsum(trfrag(cspool, a_csq, base, 1024, wrd[hc]), cs_q)
                if kk == 0: colsum(trfrag(cspool, a_csw, slot * 12288, 512, wrd[hc]), cs_w)
    halfswap_op(p, "add_f32", cs_q, ctmp[0]); halfswap_op(p, "add_f32", cs_w, ctmp[1])
    a_m = ctmp[2]
    p.v("lshlrev_b32", a_m, 2, v_l31); p.v("add_u32", a_m, MISC, a_m)
    a_mw = ctmp[3]
    p.s("lshl_b32", sT[0], s_wave, 7)
    p.v("add_u32", a_mw, sT[0], a_m)
    p.ds_write("ds_write_b32", a_mw, cs_q, offset=0, xw=["%csw0"])
    p.ds_write("ds_write_b32", a_mw, cs_w, offset=512, xw=["%csw1"])
    p.barrier(xr=["%csw0", "%csw1"] + xrd[7] + wrd[14] + wrd[15], xw=["%csrdy", "%Xfree7", "%Wfree15"])
    csv = [V(64 + i) for i in range(8)]
    for i in range(8): p.ds_read("ds_read_b32", csv[i], a_m, offset=128 * i, xr=["%csrdy"])
    p.v("add_f32", csv[4], csv[4], csv[6]); p.v("add_f32", csv[5], csv[5], csv[7])
    AF = [V(80 + 4 * i, 4) for i in range(6)]; BF = [V(104 + 4 * u, 4) for u in range(2)]
    for i in range(6):
        hi = V(72); lo = V(73)
        p.v("cvt_pk_bf16_f32", hi, csv[i], csv[i]); p.v("and_b32", hi, 0xffff0000, hi)
        p.v("sub_f32", lo, csv[i], hi)
        p.v("cvt_pk_bf16_f32", AF[i][0], hi, lo)
        for q in range(1, 4): p.v("mov_b32", AF[i][q], 0)
    p.valu("v_cmp_eq_u32", VCC, 0, v_h)
    for u in range(2):
        p.v("cvt_pk_bf16_f32", V(72), xst[u][0], xst[u][0]); p.v("xor_b32", V(72), 0x80008000, V(72))
        p.valu("v_cndmask_b32", BF[u][0], 0, V(72))
        for q in range(1, 4): p.v("mov_b32", BF[u][q], 0)
    for t in range(4):
        for u in range(2): p.mfma(QACC(u, t), AF[t], BF[u], QACC(u, t))
    for tau in range(2):
        for u in range(2): p.mfma(BACC(tau, u), AF[4 + tau], BF[u], BACC(tau, u))
    for pg in (1, 4, 7, 10): page_free[pg] = ["%Xfree7"]
    for pg in (12, 13): page_free[pg] = ["%Wfree15"]
    dma_kv("K", 4); dma_kv("V", 3); dma_kv("K", 5); dma_kv("V", 4)
    QF = lambda u, kk: V(192 + 8 * (4 * u + kk // 2) + 4 * (kk % 2), 4)
    qs = [V(74), V(75)]
    for u in range(2): p.v("mul_f32", qs[u], QSCALE, xst[u][1])
    for idx in range(7, -1, -1):
        u, t = idx // 4, idx % 4
        acc = QACC(u, t)
        for r in range(16): p.v("mul_f32", acc[r], acc[r], qs[u])
        for i in range(7, -1, -1): p.v("cvt_pk_bf16_f32", V(192 + 8 * idx + i), acc[2 * i], acc[2 * i + 1])
    p.flush(verbose=True); stamp(p, "phase1 done")
    if dbg == "q":
        p.s("lshl_b32", sT[0], s_wg, 16); p.s("lshl_b32", sT[1], s_wave, 14); p.s("add_u32", sT[0], sT[0], sT[1]); p.s("add_u32", sT[0], sT[0], WS_DBG)
        p.v("lshlrev_b32", V(64), 4, V(0))
        for u in range(2):
            for kk in range(8):
                p.s("add_u32", sT[1], sT[0], (u * 8 + kk) * 1024)
                p.bstore("buffer_store_dwordx4", QF(u, kk), V(64), SWS, sT[1])
        p.flush(schedule=False)

    C0 = -2.0 * math.sqrt(2.0 / math.pi) * LOG2E; C1 = C0 * 0.044715
    s_C1 = S(88); p.s("mov_b32", s_C1, C1) if False else None
    v_c1 = V(44); v_c0 = V(45)
    p.v("mov_b32", v_c1, C1); p.v("mov_b32", v_c0, C0)
    voff16 = V(46)
    p.v("lshlrev_b32", voff16, 4, V(0))
    voff8 = V(47)
    p.v("lshlrev_b32", voff8, 3, v_l31)
    for tau in range(2):
        st = (s_tA, s_tB)[tau]
        s_zb = S(89 + tau); s_sb = S(91 + tau)
        p.s("lshl_b32", sT[0], s_qt, 3); p.s("lshl_b32", sT[1], s_wave, 1); p.s("add_u32", sT[0], sT[0], sT[1])
        p.s("mul_i32", sT[0], sT[0], 44 * 1024)
        p.s("lshl_b32", sT[1], st, 11)
        p.s("add_u32", sT[2], sT[1], WS_Z1F)
        p.s("add_u32", sT[3], sT[1], WS_Z2R - 44 * 1024)
        p.scmp("s_cmp_lt_u32", st, 22)
        p.s("cselect_b32", s_zb, sT[2], sT[3])
        p.s("add_u32", s_zb, s_zb, sT[0])
        p.scmp("s_cmp_lt_u32", st, 44)
        p.s("cselect_b32", s_zb, s_zb, WS_SIZE)
        p.s("sub_u32", sT[1], st, 22); p.s("lshl_b32", sT[1], sT[1], 11)
        p.s("lshl_b32", sT[2], s_qt, 8); p.s("add_u32", sT[1], sT[1], sT[2]); p.s("lshl_b32", sT[2], s_wave, 6); p.s("add_u32", sT[1], sT[1], sT[2])
        p.s("lshl_b32", sT[1], sT[1], 3); p.s("add_u32", sT[1], sT[1], WS_Z2STAT)
        p.scmp("s_cmp_lt_u32", st, 22); p.s("cselect_b32", s_sb, WS_SIZE, sT[1])
        p.scmp("s_cmp_lt_u32", st, 44); p.s("cselect_b32", s_sb, s_sb, WS_SIZE)
        s_msk = S(93 + tau)
        p.scmp("s_cmp_eq_u32", st, 43); p.s("cselect_b32", s_msk, 0, 1.0)
        for u in range(2):
            acc = BACC(tau, u)
            zs = [V(128 + 32 * (2 * tau + u) % 64 + r) for r in range(16)]
            zs = [V(128 + 16 * ((2 * tau + u) % 4) + r) for r in range(16)]
            pk = V(96 + 8 * ((2 * tau + u) % 4), 8)
            sm = [V(48), V(49), V(50), V(51)]
            tt = [V(52 + i) for i in range(8)]
            for r in range(16):
                x = zs[r]; a = tt[(2 * r) % 8]; b = tt[(2 * r + 1) % 8]
                p.v("accvgpr_read_b32", x, acc[r])
                p.v("mul_f32", x, x, xst[u][1])
                p.v("mul_f32", a, x, x)
                p.v("fma_f32", a, a, v_c1, v_c0)
                p.v("mul_f32", a, a, x)
                p.v("exp_f32", a, a)
                p.v("add_f32", a, 1.0, a)
                p.v("rcp_f32", a, a)
                p.v("mul_f32", x, x, a)
                k = 0 if r < 8 else 2
                if r % 8 == 0:
                    p.v("mov_b32", sm[k], x); p.v("mul_f32", sm[k + 1], x, x)
                else:
                    p.v("add_f32", sm[k], sm[k], x); p.v("fmac_f32", sm[k + 1], x, x)
            for i in range(8): p.v("cvt_pk_bf16_f32", pk[i], zs[2 * i], zs[2 * i + 1])
            for kk in range(2):
                p.s("add_u32", sT[4 + kk], s_zb, u * 44 * 1024 + kk * 1024)
                p.bstore("buffer_store_dwordx4", pk[4 * kk:4 * kk + 4], voff16, SWS, sT[4 + kk], flags="sc1", xw=[f"%stz{tau}{u}{kk}"])
            p.v("fma_f32", sm[0], sm[2], s_msk, sm[0]); p.v("fma_f32", sm[1], sm[3], s_msk, sm[1])
            halfswap_op(p, "add_f32", sm[0], tt[0]); halfswap_op(p, "add_f32", sm[1], tt[1])
            p.s("add_u32", sT[3], s_sb, u * 256)
            p.bstore("buffer_store_dwordx2", V(48, 2), voff8, SWS, sT[3], flags="sc1", xw=[f"%sts{tau}{u}"])
    p.flush(verbose=True); stamp(p, "b1 epi done")

    SB = lambda j, u: V(128 + 32 * (j % 2) + 16 * u, 16)
    PB = lambda j, u, pp: V(96 + 16 * (j % 2) + 8 * u + 4 * pp, 4)
    NEGM = lambda u: V(64 + 16 * u, 16)
    lsum = [[V(48), V(49)], [V(50), V(51)]]
    mx = V(52); mt = [V(53), V(54), V(55), V(56)]
    v_thr = V(57)
    kvpool = Pool(A(192), 16, 4)
    p.v("mov_b32", v_thr, THRESH)
    for u in range(2):
        p.v("mov_b32", lsum[u][0], 0); p.v("mov_b32", lsum[u][1], 0)
    def qk(j):
        page = KP[j % 8]; krd[j] = []
        for kk in range(8):
            r = kvpool.next(); tk = tok()
            i = p.ds_read("ds_read_b128", r, a_k[kk], offset=page * 8192, xr=[f"%Krdy{j}"]); i.writes.append(tk); krd[j].append(tk)
            for u in range(2):
                c = SB(j, u) if kk else (NEGM(u) if j else 0)
                p.mfma(SB(j, u), r, QF(u, kk), c)
    def pv(j):
        page = VP[j % 8]; vrd[j] = []
        for pp in range(2):
            for t in range(4):
                r = kvpool.next()
                for i2 in range(2):
                    tk = tok()
                    i = p.ds_read("ds_read_b64_tr_b16", r[2 * i2:2 * i2 + 2], a_v[t], offset=(page - 8) * 8192 + pp * 4096 + i2 * 1024, xr=[f"%Vrdy{j}"]); i.writes.append(tk); vrd[j].append(tk)
                for u in range(2):
                    o = A(16 * (4 * u + t), 16)
                    p.mfma(o, r, PB(j, u, pp), o if (j or pp) else 0)
    def maxchk(j):
        first = True
        vals = [SB(j, u)[r] for u in range(2) for r in range(16)]
        p.v("max3_f32", mx, vals[0], vals[1], vals[2])
        k = 3
        while k + 1 < 32:
            p.v("max3_f32", mx, vals[k], vals[k + 1], mx); k += 2
        p.v("max_f32", mx, vals[31], mx)
        p.valu("v_cmp_lt_f32", VCC, v_thr, mx)
    state = lambda j: [A(0, 128), V(48, 4), V(53, 4), V(64, 32), SB(j, 0), SB(j, 1)]
    s_ret = S(96, 2)
    def rare(j):
        q = Prog()
        q.nop(15)
        for u in range(2):
            s = SB(j, u)
            q.v("max3_f32", mt[0], s[0], s[1], s[2])
            k = 3
            while k + 1 < 16:
                q.v("max3_f32", mt[0], s[k], s[k + 1], mt[0]); k += 2
            q.v("max_f32", mt[0], s[15], mt[0])
            halfswap_op(q, "max_f32", mt[0], mt[1])
            q.v("max_f32", mt[0], 0, mt[0])
            q.v("sub_f32", mt[1], 0, mt[0]); q.v("exp_f32", mt[1], mt[1])
            for r in range(16):
                q.v("sub_f32", s[r], s[r], mt[0])
                q.v("sub_f32", NEGM(u)[r], NEGM(u)[r], mt[0])
            q.v("mul_f32", lsum[u][0], lsum[u][0], mt[1]); q.v("mul_f32", lsum[u][1], lsum[u][1], mt[1])
            for r in range(64):
                o = A(64 * u + r); tv = mt[2 + (r & 1)]
                q.v("accvgpr_read_b32", tv, o); q.v("mul_f32", tv, tv, mt[1]); q.v("accvgpr_write_b32", o, tv)
        q.nop(3)
        q.branch(f"s_setpc_b64 {s_ret}")
        q.flush(schedule=False)
        return q
    def first_block():
        for u in range(2):
            s = SB(0, u); m = mt[2 * u]; t = mt[2 * u + 1]
            p.v("max3_f32", m, s[0], s[1], s[2])
            k = 3
            while k + 1 < 16:
                p.v("max3_f32", m, s[k], s[k + 1], m); k += 2
            p.v("max_f32", m, s[15], m)
            halfswap_op(p, "max_f32", m, t)
            p.v("sub_f32", t, 0, m)
            for r in range(16):
                p.v("mov_b32", NEGM(u)[r], t)
                p.v("sub_f32", s[r], s[r], m)
    def softmax(j):
        for u in range(2):
            s = SB(j, u)
            for r in range(16): p.v("exp_f32", s[r], s[r])
            for pp in range(2):
                for i in range(4): p.v("cvt_pk_bf16_f32", PB(j, u, pp)[i], s[8 * pp + 2 * i], s[8 * pp + 2 * i + 1])
            for r in range(16): p.v("add_f32", lsum[u][r & 1], lsum[u][r & 1], s[r])
    def att_barrier(n, rdyK, rdyV, frees):
        xr = []; xw = []
        if rdyK is not None: xr += ktok[rdyK]; xw.append(f"%Krdy{rdyK}")
        if rdyV is not None: xr += vtok[rdyV]; xw.append(f"%Vrdy{rdyV}")
        for (w, j) in frees:
            xr += (krd if w == "K" else vrd)[j]; xw.append(f"%{w}free{j}")
            page_free[(KP if w == "K" else VP)[j % 8]] = [f"%{w}free{j}"]
        p.barrier(xr=xr, xw=xw + [f"%ta{n}"])
        if OPT.get("fine") and n in (0, 1, 3, 6, 9, 12, 15): fine(f"%ta{n}")
    rares = []
    nextK, nextV = 6, 5
    att_barrier(0, 0, None, [])
    qk(0)
    first_block()
    for s in range(16):
        frees = []
        if s >= 1: frees.append(("K", s - 1))
        if s >= 2: frees.append(("V", s - 2))
        att_barrier(s + 1, s + 1 if s + 1 < 16 else None, s, frees)
        if s >= 1 and nextK < 16 and (nextK - 8) <= s - 1: dma_kv("K", nextK); nextK += 1
        elif nextK < 8: dma_kv("K", nextK); nextK += 1
        if s >= 2 and nextV < 16 and (nextV - 8) <= s - 2: dma_kv("V", nextV); nextV += 1
        elif nextV < 8: dma_kv("V", nextV); nextV += 1
        if s + 1 < 16: qk(s + 1)
        softmax(s)
        pv(s)
        if s + 1 < 16:
            maxchk(s + 1)
            nm = f"L_rare{s + 1}"
            st = state(s + 1)
            p.branch(f"s_cbranch_vccnz {nm}\n{nm}_ret:", reads=[VCC] + st, writes=st)
            rares.append(nm)
    assert nextK == 16 and nextV == 16, (nextK, nextV)
    inv = [V(52), V(53)]
    for u in range(2):
        p.v("add_f32", lsum[u][0], lsum[u][0], lsum[u][1])
        halfswap_op(p, "add_f32", lsum[u][0], mt[2])
        p.v("rcp_f32", inv[u], lsum[u][0])
    p.s("lshl_b32", sT[0], s_qt, 3); p.s("lshl_b32", sT[1], s_wave, 1); p.s("add_u32", sT[0], sT[0], sT[1])
    p.s("lshl_b32", sT[0], sT[0], 18)
    p.s("lshl_b32", sT[1], s_head, 13)
    p.s("add_u32", sT[0], sT[0], sT[1]); p.s("add_u32", sT[0], sT[0], WS_O)
    opool = Pool(V(128), 4, 16); ppool = Pool(V(192), 8, 4)
    for u in range(2):
        for t in range(4):
            tv = opool.next()
            for r in range(16):
                p.v("accvgpr_read_b32", tv[r], A(16 * (4 * u + t) + r)); p.v("mul_f32", tv[r], tv[r], inv[u])
            for kk in range(2):
                pk = ppool.next()
                for i in range(4): p.v("cvt_pk_bf16_f32", pk[i], tv[8 * kk + 2 * i], tv[8 * kk + 2 * i + 1])
                so = S(94 + (2 * t + kk) % 4)
                p.s("add_u32", so, sT[0], u * 256 * 1024 + (2 * t + kk) * 1024)
                p.bstore("buffer_store_dwordx4", pk, voff16, SWS, so, flags="sc1", xw=[f"%sto{u}{t}{kk}"])
    p.flush(verbose=True); stamp(p, "attn done")
    if OPT.get("fine"):
        p.raw("s_waitcnt lgkmcnt(0)")
        for k in range(13): p.raw(f"v_writelane_b32 v63, s{36 + 2 * k}, {16 + k}", kind="valu")
        p.flush(schedule=False)
    stamp_dump(p, SWS, 1)
    p.raw("s_endpgm"); p.flush(schedule=False)
    for k, nm in enumerate(rares):
        p.label(nm)
        p.raw(f"s_call_b64 {s_ret}, L_rescale{(k + 1) % 2}", kind="branch")
        p.raw(f"s_branch {nm}_ret", kind="branch")
        p.flush(schedule=False)
    for par in range(2):
        p.label(f"L_rescale{par}")
        p.out += rare(par).out
    p.label("L_end_k1")
    p.raw("s_endpgm"); p.flush(schedule=False)
    return p
```

```python
from common import *
from k1 import Pool, lane_consts

XR = 0; WR = 98304; MISC = 159744; LDS_BYTES = 163840
QSCALE = LOG2E / math.sqrt(128.0)
THRESH = 8.0
PH_XST, PH_Z2S, PH_Z2N, PH_O, PH_U, PH_PART = range(6)
SWS, SDBG = SRD[0], SRD[1]
SA, SB_, SC, SD, SE, SF = SRD[2:8]
sT = [S(67 + i) for i in range(6)]
v_l31, v_h, voff16 = V(40), V(41), V(46)
v_arr, v_nonce, v_pl, v_pl24, v_l0 = V(58), V(59), V(60), V(61), V(7)
s_ret = S(96, 2)
s_tgt = S(99)
C0 = -2.0 * math.sqrt(2.0 / math.pi) * LOG2E; C1 = C0 * 0.044715
SPIN_LIMIT = 100000

class K:
    def __init__(self):
        self.p = Prog(); self.slow = []; self.ntok = 0
    def tok(self):
        self.ntok += 1; return f"%rd{self.ntok}"
    def arrive(self, phase, s_line, s_slot, xr, so, st):
        p = self.p
        p.s("lshl_b32", so, s_line, 7); p.s("lshl_b32", st, s_slot, 2); p.s("add_u32", so, so, st); p.s("add_u32", so, so, WS_FLAG + phase * 2048)
        i = p.bstore("buffer_store_dword", v_nonce, v_arr, SWS, so, flags="sc1", xr=list(xr) + ["%arr"], xw=["%arr"]); i.asap = True; i.lat = 0; i.prio = 600000
    def poll(self, name, phase, s_line, vd, so, xr, voff=None):
        p = self.p
        voff = voff or v_pl
        p.s("lshl_b32", so, s_line, 7); p.s("add_u32", so, so, WS_FLAG + phase * 2048)
        i = p.bload("buffer_load_dword", vd, voff, SWS, so, flags="sc1", xr=list(xr) + ["%arr"], lat=1500); i.asap = True; i.prio = 600000
        p.valu("v_cmp_ne_u32", VCC, v_nonce, vd)
        p.branch(f"s_cbranch_vccnz L_slow_{name}\nL_ret_{name}:", reads=[VCC, so, vd], writes=[f"%chk_{name}"])
        self.slow.append((name, voff, SWS, so, vd, f"v_cmp_ne_u32 vcc, {v_nonce}, {vd}"))
        return f"%chk_{name}"
    def emit_slow(self):
        p = self.p
        for sidx, (name, voff, srd, so, vd, cmp) in enumerate(self.slow):
            diag = f"    s_mov_b32 s101, {sidx * 32 + 24}\n    v_mov_b32 v62, 1\n    buffer_atomic_add v62, {v_arr}, {SDBG}, s101 offen sc1\n" if STAMPS["on"] else ""
            p.text(f"""L_slow_{name}:
{diag}    s_mov_b32 s100, 0
L_spin_{name}:
    s_sleep {OPT.get('sleep', 8)}
    buffer_load_dword {vd}, {voff}, {srd}, {so} offen sc1
    s_waitcnt vmcnt(0)
    {cmp}
    s_nop 4
    s_cbranch_vccz L_ret_{name}
    s_add_u32 s100, s100, 1
    s_cmp_lt_u32 s100, {SPIN_LIMIT}
    s_cbranch_scc1 L_spin_{name}
    s_branch L_ret_{name}""")

def gelu_ops(p, x, a, v_c1):
    p.v("mul_f32", a, x, x)
    p.valu("v_fmaak_f32", a, a, v_c1, C0)
    p.v("mul_f32", a, a, x)
    p.v("exp_f32", a, a)
    p.v("add_f32", a, 1.0, a)
    p.v("rcp_f32", a, a)
    p.v("mul_f32", x, x, a)

def gen():
    global sT
    CUTS = set(str(OPT.get('cuts', '')).split(','))
    k = K(); p = k.p
    prologue(p, end="L_end")
    p.flush(); stamp(p, "start")
    SX, SWQ, SWIN, SK, SV = SA, SB_, SC, SD, SE
    SXF = SF
    s_wX, s_wW, s_wKV = S(74), S(75), S(76)
    s_wqoff, s_winoff = S(77), S(78)
    s_c1, s_c2, s_c3 = S(79), S(80), S(81)
    s_colA, s_colB = S(82), S(83)
    s_tA, s_tB = S(84), S(85)
    s_kv = [S(86), S(87)]
    s_f = [S(88), S(89), S(90), S(91)]
    make_srd(p, SXF, P_X, size=NROW * DM * 2)
    make_srd(p, SWS, P_WS, size=WS_SIZE)
    make_srd(p, SDBG, P_DBG, size=256)
    s_xrow = S(92)
    p.s("lshl_b32", s_xrow, s_qt, 8); p.s("lshl_b32", sT[0], s_head, 3); p.s("add_u32", s_xrow, s_xrow, sT[0])
    p.s("lshl_b32", sT[0], s_wave, 1); p.s("add_u32", s_xrow, s_xrow, sT[0])
    p.s("lshl_b32", sT[1], s_xrow, 10)
    p.v("lshlrev_b32", voff16, 4, V(0))
    xd = [V(48, 4), V(52, 4)]
    p.bload("buffer_load_dwordx4", xd[0], voff16, SXF, sT[1]); p.bload("buffer_load_dwordx4", xd[1], voff16, SXF, sT[1], offset=1024)
    p.s("lshl_b32", sT[0], s_qt, 18)
    make_srd(p, SX, P_X, off=sT[0], size=256 * 1024)
    p.s("lshl_b32", sT[2], s_head, 8)
    make_srd(p, SWQ, P_WQ, off=sT[2], size=512 * 8192 - 31 * 256)
    make_srd(p, SWIN, P_WIN, off_imm=-2048, size=512 * 2752 + 2048)
    p.s("lshl_b32", sT[3], s_head, 19); p.s("add_u32", sT[3], sT[3], KOFF * 256)
    make_srd(p, SK, P_K, off=sT[3], size=NK * 256)
    make_srd(p, SV, P_V, off=sT[3], size=NK * 256)
    p.s("mov_b32", s_tA, s_head)
    p.s("sub_u32", sT[4], s_head, 10); p.sel(s_tB, "ge_u32", s_head, 10, sT[4], 99)
    p.s("lshl_b32", sT[4], s_tA, 6); p.s("add_u32", sT[4], sT[4], 688 * 2); p.sel(s_colA, "lt_u32", s_tA, 22, sT[4], 0)
    p.s("lshl_b32", sT[5], s_tB, 6); p.sel(s_colB, "lt_u32", s_tB, 22, sT[5], 0)
    p.s("mul_i32", s_wX, s_wave, 24576)
    p.s("mul_i32", s_wW, s_wave, 3072); p.s("add_u32", s_wW, s_wW, WR)
    p.s("lshl_b32", s_wKV, s_wave, 11)
    p.s("mov_b32", s_wqoff, 0); p.s("mov_b32", s_winoff, 0)
    p.s("mov_b32", s_c1, 14336); p.s("mov_b32", s_c2, 32768); p.s("mov_b32", s_c3, 47104)
    names = ["l31", "h", "g1", "r4", "c4", "t0", "t1", "trc", "r16", "s16", "r8", "s8", "t2", "t3", "w"]
    T = {n: V(128 + i) for i, n in enumerate(names)}
    lane_consts(p, T)
    p.v("mov_b32", T["w"], s_wave)
    v_x = [V(2), V(3)]; v_wq = [V(4), V(5)]; v_win = V(6)
    a_x = [V(8 + j) for j in range(4)]; a_wq = [V(12 + t) for t in range(4)]; a_win = [V(16), V(17)]
    a_csq, a_csw = V(18), V(19)
    v_k = [V(20), V(21)]; v_v = V(22)
    a_k = [V(24 + q) for q in range(8)]; a_v = [V(32 + t) for t in range(4)]
    t0, t1, t2, t3 = T["t0"], T["t1"], T["t2"], T["t3"]
    p.v("lshlrev_b32", t0, 6, T["w"]); p.v("add_u32", t0, t0, T["r8"]); p.v("lshlrev_b32", t0, 10, t0)
    p.v("lshrrev_b32", t1, 1, T["r8"])
    p.v("xor_b32", t2, T["s8"], t1); p.v("lshl_add_u32", v_x[0], t2, 4, t0)
    p.v("or_b32", t1, 4, t1); p.v("xor_b32", t2, T["s8"], t1); p.v("lshl_add_u32", v_x[1], t2, 4, t0)
    p.v("add_u32", v_x[1], 8192 - 1024, v_x[1])
    p.v("lshlrev_b32", t0, 3, T["w"]); p.v("add_u32", t0, t0, T["r16"])
    p.v("lshlrev_b32", t1, 13, t0)
    p.v("lshrrev_b32", t2, 2, T["s16"]); p.v("xor_b32", t2, t2, T["r16"]); p.v("lshlrev_b32", t2, 6, t2)
    p.v("and_b32", t3, 3, T["s16"]); p.v("lshl_add_u32", t2, t3, 4, t2)
    p.v("add_u32", v_wq[0], t1, t2); p.v("add_u32", v_wq[1], 32768 - 1024, v_wq[0])
    p.v("lshl_add_u32", v_v, t0, 8, t2)
    p.v("and_b32", t1, 15, t0); p.v("xor_b32", t1, T["s16"], t1); p.v("lshlrev_b32", t1, 4, t1); p.v("lshl_add_u32", v_k[0], t0, 8, t1)
    p.v("add_u32", t0, 4, t0)
    p.v("and_b32", t1, 15, t0); p.v("xor_b32", t1, T["s16"], t1); p.v("lshlrev_b32", t1, 4, t1); p.v("lshl_add_u32", v_k[1], t0, 8, t1)
    p.v("subrev_u32", v_k[1], 1024, v_k[1])
    p.v("lshlrev_b32", t0, 3, T["w"]); p.v("add_u32", t0, t0, T["r8"])
    p.s("mov_b32", sT[5], 2752)
    p.v("mul_lo_u32", t0, t0, sT[5])
    p.v("lshrrev_b32", t1, 2, T["s8"]); p.v("bfe_u32", t2, T["r8"], 1, 1); p.v("xor_b32", t1, t1, t2)
    p.valu("v_cmp_eq_u32", VCC, 0, t1)
    p.v("mov_b32", t2, s_colB); p.v("mov_b32", t3, s_colA)
    p.valu("v_cndmask_b32", t2, t2, t3)
    p.v("add_u32", t0, t0, t2)
    p.v("and_b32", t3, 3, T["s8"]); p.v("lshl_add_u32", v_win, t3, 4, t0)
    p.v("bfe_u32", t0, T["l31"], 1, 3); p.v("xor_b32", t0, t0, T["h"]); p.v("lshlrev_b32", t0, 4, t0)
    p.v("lshl_add_u32", t0, T["l31"], 7, t0); p.v("add_u32", t0, s_wX, t0)
    for j in range(4): p.v("xor_b32", a_x[j], j << 5, t0)
    p.s("mov_b32", sT[5], 3072)
    p.v("mul_lo_u32", t0, T["h"], sT[5]); p.v("add_u32", t0, WR, t0); p.v("add_u32", t0, t0, T["trc"])
    p.v("lshl_add_u32", t1, T["r4"], 8, t0)
    for t in range(4):
        p.v("xor_b32", t2, t, T["r4"]); p.v("lshl_add_u32", a_wq[t], t2, 6, t1)
    p.v("xor_b32", t2, T["w"], T["r4"]); p.v("lshl_add_u32", a_csq, t2, 6, t1)
    p.v("lshl_add_u32", t1, T["r4"], 7, t0); p.v("add_u32", t1, 2048, t1)
    p.v("lshrrev_b32", t3, 1, T["r4"])
    for tau in range(2):
        p.v("xor_b32", t2, tau, t3); p.v("lshl_add_u32", a_win[tau], t2, 6, t1)
    p.v("and_b32", t2, 1, T["w"]); p.v("xor_b32", t2, t2, t3); p.v("lshl_add_u32", a_csw, t2, 6, t1)
    p.v("lshrrev_b32", t2, 1, T["w"]); p.s("mov_b32", sT[5], 6144); p.v("mul_lo_u32", t2, t2, sT[5]); p.v("add_u32", a_csw, a_csw, t2)
    p.v("and_b32", t0, 0x13, T["l31"]); p.v("bfe_u32", t1, T["l31"], 2, 1); p.v("lshl_or_b32", t0, t1, 3, t0)
    p.v("bfe_u32", t1, T["l31"], 3, 1); p.v("lshl_or_b32", t0, t1, 2, t0)
    p.v("and_b32", t1, 15, t0); p.v("xor_b32", t1, t1, T["h"]); p.v("lshlrev_b32", t1, 4, t1); p.v("lshl_add_u32", t1, t0, 8, t1)
    for q in range(8): p.v("xor_b32", a_k[q], q << 5, t1)
    p.v("lshl_add_u32", t0, T["h"], 3, T["r4"]); p.v("lshlrev_b32", t0, 8, t0); p.v("add_u32", t0, t0, T["trc"]); p.v("add_u32", t0, 65536, t0)
    for t in range(4):
        p.v("xor_b32", t2, t, T["r4"]); p.v("lshl_add_u32", a_v[t], t2, 6, t0)
    p.v("mov_b32", v_l31, T["l31"]); p.v("mov_b32", v_h, T["h"])
    p.valu("v_cmp_eq_u32", VCC, 0, V(0))
    p.v("mov_b32", t0, 0x7ffffff0)
    p.valu("v_cndmask_b32", v_l0, t0, 0) if False else None
    p.v("mov_b32", t1, 0)
    p.valu("v_cndmask_b32", v_l0, t0, t1)
    p.sel(sT[4], "eq_u32", s_wave, 0, 0, 0x7ffffff0)
    p.v("or_b32", v_arr, sT[4], v_l0)
    p.v("and_b32", v_pl, 31, V(0)); p.v("min_u32", v_pl24, 23, v_pl)
    p.v("lshlrev_b32", v_pl, 2, v_pl); p.v("or_b32", v_pl, sT[4], v_pl)
    p.v("lshlrev_b32", v_pl24, 2, v_pl24); p.v("or_b32", v_pl24, sT[4], v_pl24)
    p.sel(s_tgt, "eq_u32", s_wave, 0, 0, 1)
    p.raw("s_memrealtime s[100:101]", kind="smem", writes=[S(100, 2)], lat=200)
    vn = V(1); vno = V(23)
    p.s("or_b32", S(100), S(100), 1)
    p.v("mov_b32", vn, S(100))
    p.valu("v_cmp_gt_u32", VCC, 8, V(0))
    p.v("lshlrev_b32", vno, 5, V(0)); p.v("mov_b32", t1, 0x7ffffff0)
    p.valu("v_cndmask_b32", vno, t1, vno)
    p.sel(sT[5], "eq_u32", s_wg, 0, 0, 0x7ffffff0)
    p.v("or_b32", vno, sT[5], vno); p.v("or_b32", vno, sT[4], vno)
    i = p.bstore("buffer_store_dword", vn, vno, SDBG, 0, flags="sc1", xw=["%nonce_st"]); i.asap = True; i.prio = 900000
    if OPT.get("split"): p.flush(vm_space=4); stamp(p, "prologue done")

    QACC = lambda u, t: V(128 + 16 * (4 * u + t), 16)
    BACC = lambda tau, u: A(128 + 16 * (2 * tau + u), 16)
    xpool = Pool(A(192), 8, 4); wpool = Pool(V(80), 12, 4); cspool = Pool(V(64), 3, 4)
    cs_q, cs_w = V(42), V(43)
    ctmp = [V(76), V(77), V(78), V(79)]
    p.v("mov_b32", cs_w, 0)
    ONES = A(224, 4); CSQ = A(228, 16)
    p.v("mov_b32", cs_q, 0x3f803f80)
    for q in range(4): p.v("accvgpr_write_b32", ONES[q], cs_q)
    xtok = {}; wtok = {}; xrd = {}; wrd = {}
    def dma_x(c):
        slot = c % 3; toks = []
        for i in range(8):
            if i % 4 == 0: p.s("add_u32", M0, s_wX, slot * 8192 + (i // 4) * 4096)
            soff = [0, 0, s_c1, s_c1, s_c2, s_c2, s_c3, s_c3][i]
            tk = f"%X{c}.{i}"
            p.dma(v_x[i & 1], SX, soff, offset=(i % 4) * 1024, xr=xrd.get(c - 3, []), xw=[tk]); toks.append(tk)
        xtok[c] = toks
        if c < 7:
            p.v("add_u32", v_x[0], 128, v_x[0]); p.v("add_u32", v_x[1], 128, v_x[1])
    def dma_w(hc, xr):
        slot = hc % 5
        p.s("add_u32", M0, s_wW, slot * 12288)
        toks = [f"%W{hc}.{i}" for i in range(3)]
        p.dma(v_wq[0], SWQ, s_wqoff, offset=0, xr=xr, xw=[toks[0]])
        p.dma(v_wq[1], SWQ, s_wqoff, offset=1024, xr=xr, xw=[toks[1]])
        p.dma(v_win, SWIN, s_winoff, offset=2048, xr=xr, xw=[toks[2]])
        wtok[hc] = toks
        if hc < 15:
            p.s("add_u32", s_wqoff, s_wqoff, 32 * 8192); p.s("add_u32", s_winoff, s_winoff, 32 * 2752)
    KPG = [2, 5, 0, 3, 6, 1, 4, 7, 0, 3, 6, 1, 4, 7, 5, 2]
    VPG = [8, 11, 14, 15, 9, 10, 12, 13] * 2
    page_free = {}; ktok = {}; vtok = {}; krd = {}; vrd = {}
    def dma_kv(which, j):
        page = (KPG if which == "K" else VPG)[j]
        xr = page_free[page]
        p.s("add_u32", M0, s_wKV, page * 8192)
        so = s_kv[0 if which == "K" else 1]
        p.s("mov_b32", so, j * 8192)
        toks = [f"%{which}{j}.0", f"%{which}{j}.1"]
        if which == "K":
            p.dma(v_k[0], SK, so, offset=0, xr=xr, xw=[toks[0]]); p.dma(v_k[1], SK, so, offset=1024, xr=xr, xw=[toks[1]])
            ktok[j] = toks
        else:
            p.dma(v_v, SV, so, offset=0, xr=xr, xw=[toks[0]]); p.dma(v_v, SV, so, offset=1024, xr=xr, xw=[toks[1]])
            vtok[j] = toks
    dma_x(0); dma_w(0, []); dma_w(1, []); dma_x(1); dma_w(2, []); dma_x(2)
    p.flush(vm_space=4)
    res = V(48, 4)
    xa, xb, xs = V(56), V(57), V(44); xm = [V(45), V(47)]; xr_ = [V(36), V(37)]
    for r in range(2):
        d = xd[r]
        for pas in range(2):
            for i in range(4):
                p.v("lshlrev_b32", xa, 16, d[i]); p.v("and_b32", xb, 0xffff0000, d[i])
                if pas == 0:
                    if i == 0: p.v("add_f32", xs, xa, xb)
                    else: p.v("add_f32", xs, xs, xa); p.v("add_f32", xs, xs, xb)
                else:
                    p.v("sub_f32", xa, xa, xm[r]); p.v("sub_f32", xb, xb, xm[r])
                    if i == 0: p.v("mul_f32", xs, xa, xa)
                    else: p.v("fmac_f32", xs, xa, xa)
                    p.v("fmac_f32", xs, xb, xb)
            allreduce_add(p, xs, xa)
            if pas == 0: p.v("mul_f32", xm[r], 1.0 / 512, xs)
        p.v("mul_f32", xs, 1.0 / 512, xs)
        round_bf16(p, xs, xs); p.v("add_f32", xs, 1e-5, xs); round_bf16(p, xs, xs)
        p.v("sqrt_f32", xs, xs); round_bf16(p, xs, xs)
        p.v("rcp_f32", xr_[r], xs)
    for r in range(2):
        round_bf16(p, res[2 * r], xm[r]); p.v("mov_b32", res[2 * r + 1], xr_[r])
    p.s("lshl_b32", s_f[0], s_xrow, 3)
    p.bstore("buffer_store_dwordx4", res, v_l0, SWS, s_f[0], offset=WS_XSTAT, flags="sc1", xw=["%st_xstat"])
    xst = [V(36, 2), V(38, 2)]
    v_n0 = V(39)
    p.sel(s_f[2], "eq_u32", s_wave, 0, 0, 0x7ffffff0); p.v("mov_b32", v_n0, s_f[2])
    nfine = [0]
    def fine(tk):
        kk = nfine[0]; nfine[0] += 1
        i = p.raw(f"s_memtime s[{36 + 2 * kk}:{37 + 2 * kk}]", kind="salu", reads=[tk], writes=[S(36 + 2 * kk, 2)]); i.asap = True
    tok = k.tok
    def mark(name, tk):
        if not (STAMPS["on"] and OPT.get("marks")): return
        kk = STAMPS["n"]; STAMPS["n"] += 1; STAMPS.setdefault("names", []).append(name)
        i = p.raw("s_memtime s[100:101]", kind="smem", reads=[tk, "%mk"], writes=[S(100, 2), "%mk"]); i.asap = True; i.lat = 120; i.prio = 700000
        i = p.raw(f"v_writelane_b32 v63, s100, {kk}", kind="valu", reads=[S(100), V(63), "%mk"], writes=[V(63), "%mk"]); i.asap = True; i.prio = 700000
    for hc in range(16):
        xr = list(wtok[hc]) + wrd.get(hc - 2, [])
        xw = [f"%Wrdy{hc}", f"%Wfree{hc - 2}", f"%tb{hc}"]
        if hc == 13: xr += xrd[5]; xw.append("%Xfree5")
        if hc == 15: xr += xrd[6]; xw.append("%Xfree6")
        if hc == 3: xr += ["%st_xstat"]; xw.append("%xs_pub")
        if hc == 12: xr += [chk_xst]; xw.append("%xs_ok")
        p.barrier(xr=xr, xw=xw)
        if hc == 0:
            p.s("and_b32", s_f[1], s_wg, 7); p.s("lshl_b32", s_f[1], s_f[1], 5)
            p.v("and_b32", V(23), 0x7ffffff0, v_arr); p.v("or_b32", V(23), sT4_keep, V(23)) if False else None
            i = p.bload("buffer_load_dword", v_nonce, v_n0, SDBG, s_f[1], flags="sc1", xr=["%tb0"], lat=1500); i.asap = True; i.prio = 600000
            p.valu("v_cmp_eq_u32", VCC, s_tgt, v_nonce)
            p.branch("s_cbranch_vccnz L_slow_nonce\nL_ret_nonce:", reads=[VCC, s_f[1], v_nonce], writes=["%chk_nonce"])
            k.slow.append(("nonce", v_n0, SDBG, s_f[1], v_nonce, f"v_cmp_eq_u32 vcc, {s_tgt}, {v_nonce}"))
        if hc in (0, 4, 8, 12, 15): mark(f"tb{hc}", f"%tb{hc}")
        if hc == 3: k.arrive(PH_XST, s_qt, s_head, ["%xs_pub", "%chk_nonce"], s_f[1], s_f[0])
        if hc == 9: chk_xst = k.poll("xst", PH_XST, s_qt, V(1), s_f[2], ["%tb9"])
        if hc == 12:
            p.s("lshl_b32", s_f[3], s_qt, 8); p.s("lshl_b32", s_f[0], s_wave, 6); p.s("add_u32", s_f[3], s_f[3], s_f[0]); p.s("lshl_b32", s_f[3], s_f[3], 3)
            p.v("lshlrev_b32", V(23), 3, v_l31)
            for u in range(2):
                p.bload("buffer_load_dwordx2", xst[u], V(23), SWS, s_f[3], offset=WS_XSTAT + 256 * u, flags="sc1", xr=["%xs_ok"], lat=LAT_HO)
        if hc + 3 < 16: dma_w(hc + 3, [f"%Wfree{hc - 2}"])
        if hc % 2 == 0 and hc // 2 + 2 < 8 and hc // 2 >= 1: dma_x(hc // 2 + 2)
        if hc == 13:
            for pg in (2, 5, 8, 11): page_free[pg] = ["%Xfree5"]
            page_free[14] = ["%Wfree11"]
            dma_kv("K", 0); dma_kv("K", 1); dma_kv("V", 0)
        if hc == 14:
            page_free[15] = ["%Wfree12"]
            dma_kv("V", 1); dma_kv("V", 2)
        if hc == 15:
            for pg in (0, 3, 6, 9): page_free[pg] = ["%Xfree6"]
            dma_kv("K", 2); dma_kv("K", 3)
        wrd[hc] = []
        slot = hc % 5
        for kk in range(2):
            ks = 2 * hc + kk; c = ks // 4; j = ks % 4
            xrd.setdefault(c, [])
            xf = []
            for u in range(2):
                r = xpool.next(); tk = tok()
                i = p.ds_read("ds_read_b128", r, a_x[j], offset=(c % 3) * 8192 + u * 4096, xr=xtok[c][4 * u:4 * u + 4]); i.writes.append(tk); xrd[c].append(tk)
                xf.append(r)
            def trfrag(pool, addr, base, step, lst):
                r = pool.next()
                for i2 in range(2):
                    tk = tok()
                    i = p.ds_read("ds_read_b64_tr_b16", r[2 * i2:2 * i2 + 2], addr, offset=base + i2 * step, xr=[f"%Wrdy{hc}"]); i.writes.append(tk); lst.append(tk)
                return r
            base = slot * 12288 + kk * 6144
            for t in range(4):
                wf = trfrag(wpool, a_wq[t], base, 1024, wrd[hc])
                for u in range(2): p.mfma(QACC(u, t), wf, xf[u], QACC(u, t) if ks else 0)
            for tau in range(2):
                wf = trfrag(wpool, a_win[tau], base, 512, wrd[hc])
                for u in range(2): p.mfma(BACC(tau, u), wf, xf[u], BACC(tau, u) if ks else 0)
            def colsum(fr, acc):
                for q in range(4):
                    p.v("lshlrev_b32", ctmp[0], 16, fr[q]); p.v("add_f32", acc, acc, ctmp[0])
                    p.v("and_b32", ctmp[1], 0xffff0000, fr[q]); p.v("add_f32", acc, acc, ctmp[1])
            p.mfma(CSQ, trfrag(cspool, a_csq, base, 1024, wrd[hc]), ONES, CSQ if ks else 0)
            if kk == 0: colsum(trfrag(cspool, a_csw, slot * 12288, 512, wrd[hc]), cs_w)
    halfswap_op(p, "add_f32", cs_w, ctmp[1])
    a_m = ctmp[2]; a_mw = ctmp[3]
    p.v("lshlrev_b32", a_m, 2, v_l31); p.v("add_u32", a_m, MISC, a_m)
    p.s("lshl_b32", sT[0], s_wave, 7)
    p.v("add_u32", a_mw, sT[0], a_m)
    a_cq = ctmp[0]
    p.s("add_u32", sT[1], sT[0], MISC); p.v("lshlrev_b32", a_cq, 4, v_h); p.v("add_u32", a_cq, sT[1], a_cq)
    cq = []
    for q in range(4):
        p.ds_write("ds_write_b128", a_cq, CSQ[4 * q:4 * q + 4], offset=32 * q, xw=[f"%cswQ{q}"]); cq.append(f"%cswQ{q}")
    p.ds_write("ds_write_b32", a_mw, cs_w, offset=512, xw=["%csw1"])
    p.barrier(xr=cq + ["%csw1"] + xrd[7] + wrd[14] + wrd[15], xw=["%csrdy", "%Xfree7", "%Wfree15"])
    mark("cs", "%csrdy")
    csv = [V(64 + i) for i in range(8)]
    for i in range(8): p.ds_read("ds_read_b32", csv[i], a_m, offset=128 * i, xr=["%csrdy"])
    p.v("add_f32", csv[4], csv[4], csv[6]); p.v("add_f32", csv[5], csv[5], csv[7])
    AF = [V(80 + 4 * i, 4) for i in range(6)]; BF = [V(104 + 4 * u, 4) for u in range(2)]
    for i in range(6):
        hi = V(72); lo = V(73)
        p.v("cvt_pk_bf16_f32", hi, csv[i], csv[i]); p.v("and_b32", hi, 0xffff0000, hi)
        p.v("sub_f32", lo, csv[i], hi)
        p.v("cvt_pk_bf16_f32", AF[i][0], hi, lo)
        for q in range(1, 4): p.v("mov_b32", AF[i][q], 0)
    p.valu("v_cmp_eq_u32", VCC, 0, v_h)
    for u in range(2):
        p.v("cvt_pk_bf16_f32", V(72), xst[u][0], xst[u][0]); p.v("xor_b32", V(72), 0x80008000, V(72))
        p.valu("v_cndmask_b32", BF[u][0], 0, V(72))
        for q in range(1, 4): p.v("mov_b32", BF[u][q], 0)
    for tau in range(2):
        for u in range(2): p.mfma(BACC(tau, u), AF[4 + tau], BF[u], BACC(tau, u))
    for t in range(4):
        for u in range(2): p.mfma(QACC(u, t), AF[t], BF[u], QACC(u, t))
    for pg in (1, 4, 7, 10): page_free[pg] = ["%Xfree7"]
    for pg in (12, 13): page_free[pg] = ["%Wfree15"]
    dma_kv("K", 4); dma_kv("V", 3); dma_kv("K", 5); dma_kv("V", 4)
    QF = lambda u, kk: V(192 + 8 * (4 * u + kk // 2) + 4 * (kk % 2), 4)
    qs = [V(74), V(75)]
    for u in range(2): p.v("mul_f32", qs[u], QSCALE, xst[u][1])
    for idx in range(7, -1, -1):
        u, t = idx // 4, idx % 4
        acc = QACC(u, t)
        for r in range(16): p.v("mul_f32", acc[r], acc[r], qs[u])
        for i in range(7, -1, -1): qi = p.v("cvt_pk_bf16_f32", V(192 + 8 * idx + i), acc[2 * i], acc[2 * i + 1])
    qi.writes.append("%qdone")
    if OPT.get("split"): p.flush(verbose=True); stamp(p, "phase1 done")
    else: mark("qf", "%qdone")

    SBf = lambda j, u: V(128 + 32 * (j % 2) + 16 * u, 16)
    PB = lambda j, u, pp: V(96 + 8 * u + 4 * pp, 4)
    NEGM = lambda u: V(64 + 16 * u, 16)
    lsum = [[V(48), V(49)], [V(50), V(51)]]
    mx = V(52); mt = [V(53), V(54), V(55), V(56)]
    v_thr = V(57)
    kvpool = Pool(A(192), 16, 4)
    p.v("mov_b32", v_thr, THRESH)
    for u in range(2):
        p.v("mov_b32", lsum[u][0], 0); p.v("mov_b32", lsum[u][1], 0)
    s_zb, s_sb, s_msk, s_row0 = S(77), S(78), S(79), S(80)
    p.s("lshl_b32", s_row0, s_qt, 8); p.s("lshl_b32", sT[0], s_wave, 6); p.s("add_u32", s_row0, s_row0, sT[0])
    p.s("lshr_b32", sT[0], s_row0, 5); p.s("mul_i32", sT[0], sT[0], 44 * 1024); p.s("lshl_b32", sT[1], s_tB, 11); p.s("add_u32", sT[0], sT[0], sT[1])
    p.s("add_u32", sT[0], sT[0], WS_Z1F); p.sel(s_zb, "lt_u32", s_tB, 22, sT[0], WS_SIZE)
    p.s("lshl_b32", sT[1], s_tA, 11); p.s("add_u32", sT[1], sT[1], s_row0); p.s("lshl_b32", sT[1], sT[1], 3); p.s("add_u32", sT[1], sT[1], WS_Z2STAT)
    p.sel(s_sb, "lt_u32", s_tA, 22, sT[1], WS_SIZE)
    p.sel(s_msk, "eq_u32", s_tA, 21, 0, 1.0)
    v_c1 = V(44); voff8 = V(47)
    p.v("mov_b32", v_c1, C1); p.v("lshlrev_b32", voff8, 3, v_l31)
    zpk = [V(112, 8), V(120, 8)]
    gt = [V(2 + i) for i in range(8)]
    sm = [[V(10), V(11), V(12), V(13)], [V(14), V(15), V(16), V(17)]]
    ztoks = []
    for u in range(2):
        acc = BACC(1, u)
        for kk in range(2):
            pk = V(2 + 4 * 0, 4) if False else None
        acc = BACC(0, u)
        for r in range(0, 16, 2):
            x0, x1, a0, a1 = gt[(r * 2) % 8], gt[(r * 2 + 1) % 8], gt[(r * 2 + 2) % 8], gt[(r * 2 + 3) % 8]
            p.v("accvgpr_read_b32", x0, acc[r]); p.v("accvgpr_read_b32", x1, acc[r + 1])
            p.v("mul_f32", x0, x0, xst[u][1]); p.v("mul_f32", x1, x1, xst[u][1])
            gelu_ops(p, x0, a0, v_c1); gelu_ops(p, x1, a1, v_c1)
            kq = 0 if r < 8 else 2
            if r % 8 == 0:
                p.v("add_f32", sm[u][kq], x0, x1); p.v("mul_f32", sm[u][kq + 1], x0, x0)
            else:
                p.v("add_f32", sm[u][kq], sm[u][kq], x0); p.v("add_f32", sm[u][kq], sm[u][kq], x1); p.v("fmac_f32", sm[u][kq + 1], x0, x0)
            p.v("fmac_f32", sm[u][kq + 1], x1, x1)
            p.v("cvt_pk_bf16_f32", zpk[u][r // 2], x0, x1)
        p.v("fma_f32", sm[u][0], sm[u][2], s_msk, sm[u][0]); p.v("fma_f32", sm[u][1], sm[u][3], s_msk, sm[u][1])
        halfswap_op(p, "add_f32", sm[u][0], gt[0]); halfswap_op(p, "add_f32", sm[u][1], gt[1])
        p.s("add_u32", s_f[u], s_sb, u * 256)
        p.bstore("buffer_store_dwordx2", V(sm[u][0].b, 2), voff8, SWS, s_f[u], flags="sc1", xw=[f"%sts{u}"]); ztoks.append(f"%sts{u}")
    z1toks = []
    def z1_epilogue(gate):
        g4 = [V(18), V(19), V(23), V(42)]; pkr = [V(2, 4), V(6, 4)]
        for u in range(2):
            acc = BACC(1, u)
            for kk in range(2):
                pk = pkr[kk]
                for i in range(4):
                    x0, x1 = g4[(2 * i) % 4], g4[(2 * i + 1) % 4]
                    p.v("accvgpr_read_b32", x0, acc[8 * kk + 2 * i]); p.v("accvgpr_read_b32", x1, acc[8 * kk + 2 * i + 1])
                    p.v("mul_f32", x0, x0, xst[u][1]); p.v("mul_f32", x1, x1, xst[u][1])
                    p.v("cvt_pk_bf16_f32", pk[i], x0, x1)
                so = S(94 + kk)
                p.s("add_u32", so, s_zb, u * 44 * 1024 + kk * 1024)
                i = p.bstore("buffer_store_dwordx4", pk, voff16, SWS, so, flags="sc1", xr=gate, xw=[f"%stz{u}{kk}"]); z1toks.append(f"%stz{u}{kk}"); i.prio = 500000
        p.raw("s_nop 0", kind="salu", reads=[V(2, 4), V(6, 4)], writes=["%z1rd"])
    def qk(j):
        page = KPG[j]; krd[j] = []
        for kk in range(8):
            r = kvpool.next(); tk = tok()
            i = p.ds_read("ds_read_b128", r, a_k[kk], offset=page * 8192, xr=[f"%Krdy{j}"]); i.writes.append(tk); krd[j].append(tk)
            for u in range(2):
                c = SBf(j, u) if kk else (NEGM(u) if j else 0)
                p.mfma(SBf(j, u), r, QF(u, kk), c)
    def pv(j):
        page = VPG[j]; vrd[j] = []
        for pp in range(2):
            for t in range(4):
                r = kvpool.next()
                for i2 in range(2):
                    tk = tok()
                    i = p.ds_read("ds_read_b64_tr_b16", r[2 * i2:2 * i2 + 2], a_v[t], offset=(page - 8) * 8192 + pp * 4096 + i2 * 1024, xr=[f"%Vrdy{j}"]); i.writes.append(tk); vrd[j].append(tk)
                for u in range(2):
                    o = A(16 * (4 * u + t), 16)
                    p.mfma(o, r, PB(j, u, pp), o if (j or pp) else 0)
    def maxchk(j):
        vals = [SBf(j, u)[r] for u in range(2) for r in range(16)]
        p.v("max3_f32", mx, vals[0], vals[1], vals[2])
        q = 3
        while q + 1 < 32:
            p.v("max3_f32", mx, vals[q], vals[q + 1], mx); q += 2
        p.v("max_f32", mx, vals[31], mx)
        p.valu("v_cmp_lt_f32", VCC, v_thr, mx)
    state = lambda j: [A(0, 128), V(48, 4), V(53, 4), V(64, 32), SBf(j, 0), SBf(j, 1)]
    def rare(j):
        q = Prog()
        q.nop(15)
        for u in range(2):
            s = SBf(j, u)
            q.v("max3_f32", mt[0], s[0], s[1], s[2])
            n = 3
            while n + 1 < 16:
                q.v("max3_f32", mt[0], s[n], s[n + 1], mt[0]); n += 2
            q.v("max_f32", mt[0], s[15], mt[0])
            halfswap_op(q, "max_f32", mt[0], mt[1])
            q.v("max_f32", mt[0], 0, mt[0])
            q.v("sub_f32", mt[1], 0, mt[0]); q.v("exp_f32", mt[1], mt[1])
            for r in range(16):
                q.v("sub_f32", s[r], s[r], mt[0]); q.v("sub_f32", NEGM(u)[r], NEGM(u)[r], mt[0])
            q.v("mul_f32", lsum[u][0], lsum[u][0], mt[1]); q.v("mul_f32", lsum[u][1], lsum[u][1], mt[1])
            for r in range(64):
                o = A(64 * u + r); tv = mt[2 + (r & 1)]
                q.v("accvgpr_read_b32", tv, o); q.v("mul_f32", tv, tv, mt[1]); q.v("accvgpr_write_b32", o, tv)
        q.nop(3)
        q.branch(f"s_setpc_b64 {s_ret}")
        q.flush(schedule=False)
        return q
    def first_block():
        for u in range(2):
            s = SBf(0, u); m = mt[2 * u]; t = mt[2 * u + 1]
            p.v("max3_f32", m, s[0], s[1], s[2])
            n = 3
            while n + 1 < 16:
                p.v("max3_f32", m, s[n], s[n + 1], m); n += 2
            p.v("max_f32", m, s[15], m)
            halfswap_op(p, "max_f32", m, t)
            p.v("sub_f32", t, 0, m)
            for r in range(16):
                p.v("mov_b32", NEGM(u)[r], t); p.v("sub_f32", s[r], s[r], m)
    def softmax(j):
        for u in range(2):
            s = SBf(j, u)
            for r in range(16): p.v("exp_f32", s[r], s[r])
            for pp in range(2):
                for i in range(4): p.v("cvt_pk_bf16_f32", PB(j, u, pp)[i], s[8 * pp + 2 * i], s[8 * pp + 2 * i + 1])
            for r in range(16): p.v("add_f32", lsum[u][r & 1], lsum[u][r & 1], s[r])
    def att_barrier(n, rdyK, rdyV, frees, xr0=(), xw0=()):
        xr = list(xr0); xw = list(xw0) + [f"%ta{n}"]
        if rdyK is not None: xr += ktok[rdyK]; xw.append(f"%Krdy{rdyK}")
        if rdyV is not None: xr += vtok[rdyV]; xw.append(f"%Vrdy{rdyV}")
        for (w, j) in frees:
            xr += (krd if w == "K" else vrd)[j]; xw.append(f"%{w}free{j}")
            page_free[(KPG if w == "K" else VPG)[j]] = [f"%{w}free{j}"]; freed.add((w, j))
        p.barrier(xr=xr, xw=xw)
        if n in (0, 1, 2, 4, 6, 7, 8, 9, 10, 11, 12, 14, 16): mark(f"ta{n}", f"%ta{n}")
    NB_Z2S, NB_POLL, NB_Z2N, NB_ZPOLL = OPT.get("nb_z2s", 2), OPT.get("nb_poll", 5), OPT.get("nb_z2n", 12), OPT.get("nb_zpoll", 14)
    def norm_z2():
        NL = 131072
        vst = V(18); a_w = V(19); a_r = V(23)
        p.s("mov_b32", sT[0], 11 * 2048 * 8)
        p.v("mul_lo_u32", vst, v_h, sT[0]); p.v("add_u32", vst, vst, voff8)
        p.s("lshl_b32", sT[1], s_row0, 3); p.s("add_u32", sT[1], sT[1], WS_Z2STAT)
        p.s("lshl_b32", sT[2], s_wave, 12); p.s("add_u32", sT[2], sT[2], NL)
        p.v("lshlrev_b32", a_w, 6, v_l31); p.v("lshl_add_u32", a_w, v_h, 4, a_w); p.v("add_u32", a_w, sT[2], a_w)
        p.v("bfe_u32", gt[0], V(0), 2, 2); p.v("lshl_add_u32", gt[1], v_h, 3, gt[0]); p.v("lshlrev_b32", gt[1], 6, gt[1])
        p.v("and_b32", gt[2], 63, a_v[0]); p.v("lshlrev_b32", gt[3], 6, gt[0]); p.v("and_b32", gt[3], 63, gt[3])
        p.v("add_u32", gt[1], gt[1], gt[2]); p.v("add_u32", a_r, sT[2], gt[1])
        p.s("lshl_b32", sT[3], s_tA, 7); p.s("lshr_b32", sT[4], s_row0, 4); p.s("add_u32", sT[3], sT[3], sT[4]); p.s("lshl_b32", sT[3], sT[3], 10)
        p.s("add_u32", sT[3], sT[3], WS_Z2N); p.sel(sT[3], "lt_u32", s_tA, 22, sT[3], WS_SIZE)
        toks = []
        for u in range(2):
            st = [A(128 + 22 * u + 2 * i, 2) for i in range(11)]
            for i in range(11):
                so = s_f[i % 4]
                p.s("add_u32", so, sT[1], i * 2048 * 8 + u * 256)
                if OPT.get("x_noload"): p.raw("s_nop 0", kind="salu", reads=["%z2s_ok"], writes=[st[i]])
                else: p.bload("buffer_load_dwordx2", st[i], vst, SWS, so, flags="sc1" if not OPT.get("x_nosc1") else "", xr=["%z2s_ok"], lat=OPT.get("lat_ho", LAT_HO))
            s1, s2, ta, tb = sm[u][0], sm[u][1], sm[u][2], sm[u][3]
            for i in range(11):
                p.v("accvgpr_read_b32", ta, st[i][0]); p.v("accvgpr_read_b32", tb, st[i][1])
                if i == 0: p.v("mov_b32", s1, ta); p.v("mov_b32", s2, tb)
                else: p.v("add_f32", s1, s1, ta); p.v("add_f32", s2, s2, tb)
            halfswap_op(p, "add_f32", s1, ta); halfswap_op(p, "add_f32", s2, tb)
            p.v("mul_f32", s1, 1.0 / 688, s1); p.v("mul_f32", s2, 1.0 / 688, s2)
            p.v("mul_f32", ta, s1, s1); p.v("sub_f32", s2, s2, ta); p.v("max_f32", s2, 0, s2)
            round_bf16(p, s1, s1)
            round_bf16(p, s2, s2); p.v("add_f32", s2, 1e-5, s2); round_bf16(p, s2, s2)
            p.v("sqrt_f32", s2, s2); round_bf16(p, s2, s2); p.v("rcp_f32", s2, s2)
            for i in range(8):
                lo, hi = gt[(2 * i) % 8], gt[(2 * i + 1) % 8]
                p.v("lshlrev_b32", lo, 16, zpk[u][i]); p.v("and_b32", hi, 0xffff0000, zpk[u][i])
                p.v("sub_f32", lo, lo, s1); p.v("sub_f32", hi, hi, s1)
                p.v("mul_f32", lo, lo, s2); p.v("mul_f32", hi, hi, s2)
                p.v("cvt_pk_bf16_f32", zpk[u][i], lo, hi)
            for kk in range(2):
                p.ds_write("ds_write_b128", a_w, zpk[u][4 * kk:4 * kk + 4], offset=u * 2048 + kk * 32, xw=[f"%nz{u}{kk}"])
            for pp in range(2):
                fr = zpk[u][4 * pp:4 * pp + 4]
                for i2 in range(2):
                    p.ds_read("ds_read_b64_tr_b16", fr[2 * i2:2 * i2 + 2], a_r, offset=u * 2048 + pp * 1024 + i2 * 256, xr=[f"%nz{u}0", f"%nz{u}1"])
                so = s_f[(2 * u + pp) % 4]
                p.s("add_u32", so, sT[3], (2 * u + pp) * 1024)
                p.bstore("buffer_store_dwordx4", fr, voff16, SWS, so, flags="sc1", xw=[f"%stn{u}{pp}"]); toks.append(f"%stn{u}{pp}")
        return toks

    names2 = ["l31", "h", "g1", "r4", "c4", "t0", "t1", "trc", "r16", "s16", "r8", "s8", "t2"]
    class Pool2:
        def __init__(self, regs): self.regs = regs; self.i = 0
        def next(self):
            r = self.regs[self.i]; self.i = (self.i + 1) % len(self.regs); return r
    SSP, SBS = SA, SB_
    s_tau, s_phi = S(46), S(47)
    tB = [S(0), S(1), S(3), S(58), S(59), S(60)]
    s_wL = S(48); s_c = [S(49), S(61), S(73)]; s_z = [S(74), S(75), S(83)]
    v_s = [V(2), V(3)]; a_b = [V(4 + j) for j in range(4)]
    NSL = 3
    stok = {}; srd_ = {}
    def dma_s(c):
        slot = c % NSL; toks = []
        for i in range(8):
            if i % 4 == 0: p.s("add_u32", M0, s_wL, slot * 8192 + (i // 4) * 4096)
            soff = [0, 0, s_c[0], s_c[0], s_c[1], s_c[1], s_c[2], s_c[2]][i]
            tk = f"%SP{c}.{i}"
            p.dma(v_s[i & 1], SSP, soff, offset=(i % 4) * 1024, xr=srd_.get(c - NSL, ["%ta15"] if c < 2 else ["%attfree"]), xw=[tk]); toks.append(tk)
        stok[c] = toks
        if c < 7:
            p.v("add_u32", v_s[0], 128, v_s[0]); p.v("add_u32", v_s[1], 128, v_s[1])
    def b2_setup():
        T2 = {n: V(112 + i) for i, n in enumerate(names2)}
        lane_consts(p, T2)
        p.s("and_b32", s_tau, s_jj, 3); p.s("lshl_b32", tB[0], s_xcd, 2); p.s("add_u32", s_tau, s_tau, tB[0])
        p.s("lshr_b32", s_phi, s_jj, 2)
        p.s("lshl_b32", tB[0], s_tau, 18)
        make_srd(p, SSP, P_WSP, off=tB[0], size=64 * 4096)
        make_srd(p, SBS, P_BSP, size=4096)
        p.s("mul_i32", s_wL, s_wave, 24576)
        p.s("mov_b32", s_c[0], 65536 - 2048); p.s("mov_b32", s_c[1], 131072); p.s("mov_b32", s_c[2], 196608 - 2048)
        t0, t1, t2 = T2["t0"], T2["t1"], T2["t2"]
        p.v("lshlrev_b32", t0, 12, T2["r8"]); p.s("lshl_b32", tB[1], s_wave, 10); p.v("add_u32", t0, tB[1], t0)
        p.v("lshrrev_b32", t1, 1, T2["r8"])
        p.v("xor_b32", t2, T2["s8"], t1); p.v("lshl_add_u32", v_s[0], t2, 4, t0)
        p.v("or_b32", t1, 4, t1); p.v("xor_b32", t2, T2["s8"], t1); p.v("lshl_add_u32", v_s[1], t2, 4, t0)
        p.v("add_u32", v_s[1], 32768 - 1024, v_s[1])
        p.v("bfe_u32", t0, T2["l31"], 1, 3); p.v("xor_b32", t0, t0, T2["h"]); p.v("lshlrev_b32", t0, 4, t0)
        p.v("lshl_add_u32", t0, T2["l31"], 7, t0); p.v("add_u32", t0, s_wL, t0)
        for j in range(4): p.v("xor_b32", a_b[j], j << 5, t0)
        for ft in range(3):
            p.s("mul_i32", tB[2], s_phi, 3); p.s("add_u32", tB[2], tB[2], ft); p.s("min_u32", tB[2], tB[2], 21)
            p.s("lshl_b32", tB[2], tB[2], 7); p.s("lshl_b32", tB[3], s_wave, 5); p.s("add_u32", tB[2], tB[2], tB[3]); p.s("lshl_b32", tB[2], tB[2], 10)
            p.s("add_u32", s_z[ft], tB[2], WS_Z2N)
        for c in range(2): dma_s(c)
    SWO, SWOUT, SX2, SOUT = SE, SB_, SC, SD
    tC = [S(67 + i) for i in range(6)]
    T3 = {n: V(64 + i) for i, n in enumerate(names2)}
    NSC = 12
    s_wL3 = S(76); s_c3 = [S(77), S(78), S(79)]; s_o = [S(80), S(81)]; s_u = [S(82), S(84)]; s_xo = S(85)
    v_w = V(20); v_w2 = V(21); a_a = [V(22), V(23)]; vo = V(24); a_b2 = [V(26), V(27)]; s_wL4 = S(86)
    CL = 40960
    def c_setup():
        s_nu2 = s_phi
        p.s("lshl_b32", tC[0], s_wave, 20); p.s("lshl_b32", tC[1], s_nu2, 7); p.s("add_u32", tC[0], tC[0], tC[1])
        make_srd(p, SWO, P_WO, off=tC[0], size=1024 * 1024)
        lane_consts(p, T3)
        t0, t1, t2 = T3["t0"], T3["t1"], T3["t2"]
        p.s("lshl_b32", s_wL3, s_wave, 14); p.s("add_u32", s_wL3, s_wL3, CLB)
        p.s("lshl_b32", s_wL4, s_wave, 13); p.s("add_u32", s_wL4, s_wL4, 65536)
        for i in range(3): p.s("mov_b32", s_c3[i], (i + 1) * (8192 - 1024))
        p.v("lshrrev_b32", t0, 2, T3["s8"]); p.v("bfe_u32", t1, T3["r8"], 1, 1); p.v("xor_b32", t0, t0, t1); p.v("lshlrev_b32", t0, 6, t0)
        p.v("and_b32", t1, 3, T3["s8"]); p.v("lshl_add_u32", t0, t1, 4, t0); p.v("lshl_add_u32", v_w, T3["r8"], 10, t0)
        p.v("mov_b32", v_w2, v_w)
        p.v("lshlrev_b32", t0, 10, T3["h"]); p.v("lshl_add_u32", t0, T3["r4"], 7, t0); p.v("add_u32", t0, t0, T3["trc"]); p.v("add_u32", t0, s_wL3, t0)
        p.v("lshrrev_b32", t1, 1, T3["r4"])
        for tn in range(2):
            p.v("xor_b32", t2, tn, t1); p.v("lshl_add_u32", a_a[tn], t2, 6, t0)
            p.v("sub_u32", a_b2[tn], a_a[tn], t0); p.v("add_u32", a_b2[tn], a_b2[tn], t0)
            p.s("sub_u32", tC[5], s_wL4, s_wL3); p.v("add_u32", a_b2[tn], tC[5], a_a[tn])
        for u in range(2):
            p.s("lshl_b32", tC[2], s_tau, 1); p.s("add_u32", tC[2], tC[2], u)
            p.s("lshl_b32", tC[3], tC[2], 8); p.s("lshl_b32", tC[4], s_wave, 6); p.s("add_u32", tC[3], tC[3], tC[4]); p.s("lshl_b32", tC[3], tC[3], 10)
            p.s("add_u32", s_o[u], tC[3], WS_O)
            p.s("mul_i32", tC[3], tC[2], 44); p.s("mul_i32", tC[4], s_wave, 11); p.s("add_u32", tC[3], tC[3], tC[4]); p.s("lshl_b32", tC[3], tC[3], 10)
            p.s("add_u32", s_u[u], tC[3], WS_U)
    def b3_setup():
        s_nu2 = s_phi
        p.s("lshl_b32", tC[0], s_nu2, 7)
        p.s("mul_i32", tC[1], s_wave, 176 * 1024); p.s("add_u32", tC[1], tC[1], tC[0])
        make_srd(p, SWOUT, P_WOUT, off=tC[1], size=0)
        p.s("sub_u32", SWOUT[2], 688 * 1024, tC[1])
        p.s("lshl_b32", tC[2], s_tau, 16); p.s("add_u32", tC[2], tC[2], tC[0])
        make_srd(p, SX2, P_X, off=tC[2], size=64 * 1024)
        make_srd(p, SOUT, P_OUT, off=tC[2], size=0)
        p.s("sub_u32", SOUT[2], 2048 * 1024, tC[2])
        p.s("and_b32", tC[3], s_wave, 1); p.s("lshl_b32", tC[3], tC[3], 15); p.s("lshr_b32", s_xo, s_wave, 1); p.s("lshl_b32", s_xo, s_xo, 6); p.s("add_u32", s_xo, s_xo, tC[3])
        p.v("lshlrev_b32", vo, 10, v_l31); p.v("lshl_add_u32", vo, v_h, 4, vo)
    CLB = 98304
    wtok = {}; wrdc = {}
    def dma_pair(gk, xr0):
        slot = gk % NSC
        srd, vw, last = (SWO, v_w, gk == 62) if gk < 64 else (SWOUT, v_w2, gk == 74)
        if slot < 8: p.s("add_u32", M0, s_wL3, slot * 2048)
        else: p.s("add_u32", M0, s_wL4, (slot - 8) * 2048)
        xr = wrdc.get(gk - NSC, []) + wrdc.get(gk + 1 - NSC, []) + list(xr0) + (["%b2done"] if slot >= 8 else [])
        for i in range(4 if gk < 74 else 2):
            tk = f"%WO{gk}.{i}"
            p.dma(vw, srd, [0, s_c3[0], s_c3[1], s_c3[2]][i], offset=i * 1024, xr=xr, xw=[tk])
            wtok.setdefault(gk + i // 2, []).append(tk)
        if not last: p.v("add_u32", vw, 32768, vw)

    SPF = SF
    s_pf = S(100)
    def pf_load(ptr, size, s_off_fn, n, gate):
        make_srd(p, SPF, ptr, size=size)
        s_off_fn()
        for i in range(n):
            ins = p.bload("buffer_load_dwordx4", A(172, 4), voff16, SPF, S(73), offset=(i % 4) * 1024, xr=[gate, "%z1rd"])
            ins.writes = []; ins.asap = False
            if i % 4 == 3 and i + 1 < n: p.s("add_u32", S(73), S(73), 4096)
    def prefetch(step, nb):
        if step == 0 or step == 1:
            def off():
                p.s("lshl_b32", S(73), s_jj, 2); p.s("add_u32", S(73), S(73), s_wave); p.s("lshl_b32", S(73), S(73), 13)
                p.s("lshl_b32", S(61), s_xcd, 20); p.s("add_u32", S(73), S(73), S(61)); p.s("add_u32", S(73), S(73), step * 4096)
            pf_load(P_WSP, 2048 * 4096, off, 4, f"%ta{nb}")
        elif step == 3:
            def off():
                p.s("lshl_b32", S(73), s_wg, 2); p.s("add_u32", S(73), S(73), s_wave); p.s("lshl_b32", S(73), S(73), 12)
            pf_load(P_WO, 4096 * 1024, off, 4, f"%ta{nb}")
        elif step == 5:
            def off():
                p.s("lshl_b32", S(73), s_wg, 2); p.s("add_u32", S(73), S(73), s_wave); p.s("lshl_b32", S(73), S(73), 10)
            pf_load(P_WOUT, 688 * 1024, off, 1, f"%ta{nb}")
    rares = []
    freed = set()
    def prev_user(w, j):
        tab = KPG if w == "K" else VPG
        c = [i for i in range(j) if tab[i] == tab[j]]
        return c[-1] if c else None
    def can_dma(w, j):
        pu = prev_user(w, j)
        return pu is None or (w, pu) in freed
    chk = {}
    nextK, nextV = 6, 5
    ntoks = []
    att_barrier(0, 0, None, [])
    qk(0)
    first_block()
    s_g1, s_g2, s_g3, s_g4, s_g5 = S(81), S(82), S(83), S(94), S(95)
    for s in range(16):
        frees = []
        if s >= 1 and ("K", s - 1) not in freed: frees.append(("K", s - 1))
        if s >= 2 and ("V", s - 2) not in freed: frees.append(("V", s - 2))
        if s == 14: frees += [("K", 14), ("V", 13)]
        xr0, xw0 = [], []
        if s + 1 == NB_Z2S: xr0 += ztoks; xw0.append("%z2s_pub")
        if s + 1 == NB_Z2N: xr0 += ntoks; xw0.append("%z2n_pub")
        if s + 1 == NB_POLL + 2: xr0 += [chk["z2s"]]; xw0.append("%z2s_ok")
        if s + 1 == OPT.get("nb_zgate", 16): xr0 += [chk["z2n"]]; xw0.append("%z2n_ok")
        att_barrier(s + 1, s + 1 if s + 1 < 16 else None, s, frees, xr0, xw0)
        if s + 1 == NB_Z2S: k.arrive(PH_Z2S, s_qt, s_head, ["%z2s_pub"], s_g1, s_g3)
        if s + 1 == NB_Z2N:
            p.s("mul_i32", s_g4, s_head, 43691); p.s("lshr_b32", s_g4, s_g4, 17)
            p.s("mul_i32", s_g5, s_g4, 3); p.s("sub_u32", s_g5, s_head, s_g5); p.s("lshl_b32", s_g5, s_g5, 3); p.s("add_u32", s_g5, s_g5, s_qt)
            k.arrive(PH_Z2N, s_g4, s_g5, ["%z2n_pub"], s_g1, s_g3)
        if s == 1: z1_epilogue(["%ta2"])
        if s == 14: b2_setup()
        if OPT.get("pf", 1):
            if s in (1, 2): prefetch(s - 1, s + 1)
            if s == 12: prefetch(3, s + 1)
            if s == 13: prefetch(5, s + 1)
        if s + 1 == NB_POLL: chk["z2s"] = k.poll("z2s", PH_Z2S, s_qt, V(1), s_g2, [f"%ta{s + 1}"])
        if s + 1 == NB_POLL + 2: ntoks = norm_z2()
        if s + 1 == NB_ZPOLL:
            p.s("lshr_b32", S(93), s_jj, 2)
            chk["z2n"] = k.poll("z2n", PH_Z2N, S(93), V(1), S(92), [f"%ta{s + 1}"], voff=v_pl24)
        if nextK < 16 and can_dma("K", nextK): dma_kv("K", nextK); nextK += 1
        if nextV < 16 and can_dma("V", nextV): dma_kv("V", nextV); nextV += 1
        if s + 1 < 16: qk(s + 1)
        softmax(s)
        pv(s)
        if f"a{s}" in CUTS and s == 15: p.flush(verbose=True); stamp(p, f"att{s}")
        if s + 1 < 16:
            maxchk(s + 1)
            nm = f"L_rare{s + 1}"; st = state(s + 1)
            p.branch(f"s_cbranch_vccnz {nm}\n{nm}_ret:", reads=[VCC] + st, writes=st)
            rares.append(nm)
            if f"a{s}" in CUTS: p.flush(verbose=True); stamp(p, f"att{s}")
    assert nextK == 16 and nextV == 16
    inv = [V(52), V(53)]
    for u in range(2):
        p.v("add_f32", lsum[u][0], lsum[u][0], lsum[u][1])
        halfswap_op(p, "add_f32", lsum[u][0], mt[2])
        p.v("rcp_f32", inv[u], lsum[u][0])
    s_ob = S(93)
    p.s("lshr_b32", sT[0], s_row0, 5); p.s("lshl_b32", sT[0], sT[0], 18)
    p.s("lshl_b32", sT[1], s_head, 13); p.s("add_u32", sT[0], sT[0], sT[1]); p.s("add_u32", s_ob, sT[0], WS_O)
    opool = Pool(V(160), 2, 16); ppool = Pool(V(96), 8, 4)
    otoks = []
    def o_tile(u, t, gate):
        tv = opool.next()
        for r in range(16):
            p.v("accvgpr_read_b32", tv[r], A(16 * (4 * u + t) + r)); p.v("mul_f32", tv[r], tv[r], inv[u])
        for kk in range(2):
            pk = ppool.next()
            for i in range(4): p.v("cvt_pk_bf16_f32", pk[i], tv[8 * kk + 2 * i], tv[8 * kk + 2 * i + 1])
            so = s_f[(2 * t + kk) % 4]
            p.s("add_u32", so, s_ob, u * 256 * 1024 + (2 * t + kk) * 1024)
            i = p.bstore("buffer_store_dwordx4", pk, voff16, SWS, so, flags="sc1", xr=gate, xw=[f"%sto{u}{t}{kk}"]); otoks.append(f"%sto{u}{t}{kk}")
            i.asap = True; i.prio = 500000
    p.barrier(xr=krd[15] + vrd[15] + vrd[14], xw=["%attfree"], lazy=False)
    if OPT.get("split"): p.flush(verbose=True); stamp(p, "attn done")

    ACC = lambda ft, u: A(128 + 16 * (2 * ft + u), 16)
    apool = Pool2([V(192 + 4 * i, 4) for i in range(16)] + [V(128 + 4 * i, 4) for i in range(8)]); bpool = Pool(V(80), 4, 4)
    for c in range(8):
        if c + 2 < 8: dma_s(c + 2)
        srd_[c] = []
        for j in range(4):
            ks = 4 * c + j
            af = []
            for ft in range(3):
                r = apool.next(); p.bload("buffer_load_dwordx4", r, voff16, SWS, s_z[ft], offset=j * 1024, flags="sc1", xr=["%z2n_ok"]); af.append(r)
            bf = []
            for u in range(2):
                r = bpool.next(); tk = tok()
                i = p.ds_read("ds_read_b128", r, a_b[j], offset=(c % NSL) * 8192 + u * 4096, xr=stok[c][4 * u:4 * u + 4]); i.writes.append(tk); srd_[c].append(tk)
                bf.append(r)
            for ft in range(3):
                for u in range(2):
                    mi = p.mfma(ACC(ft, u), af[ft], bf[u], ACC(ft, u) if ks else 0, pace=OPT.get("pace_b", 32))
            mi.writes.append(f"%b2k{ks}")
            if ks in (0, 8, 31): mark(f"b2k{ks}", f"%b2k{ks}")
            ostep = OPT.get("ostep", 1)
            if ostep == 0:
                if ks == 0:
                    for n in range(8): o_tile(n // 4, n % 4, [])
            elif ks % ostep == 0 and ks // ostep < 8:
                n = ks // ostep
                o_tile(n // 4, n % 4, [f"%b2k{ks}"])
        if c < 7:
            for ft in range(3): p.s("add_u32", s_z[ft], s_z[ft], 4096)
        if c == OPT.get("opub", 3):
            p.barrier(xr=otoks + z1toks, xw=["%o_pub"], lazy=False)
            k.arrive(PH_O, s_qt, s_head, ["%o_pub"], s_f[1], S(94))
        if c == 3: c_setup()
        if f"b{c}" in CUTS: p.flush(verbose=True); stamp(p, f"b2c{c}")
        if c == OPT.get("opoll", 5): chk["o"] = k.poll("o", PH_O, s_xcd, V(30), S(95), [f"%b2k{4 * c + 1}"])
        if c == OPT.get("opoll", 5) + 1:
            p.barrier(xr=[chk["o"]], xw=["%o_ok"], lazy=False)
            for gk in range(0, 8, 2): dma_pair(gk, [f"%b2k{4 * c - 2}"])
    s_ub = [S(38), S(39), S(40)]; s_ur = [S(41), S(42), S(43)]
    z1f = [V(8 + 4 * i, 4) for i in range(3)]; bia = [V(36 + i) for i in range(3)]
    p.v("lshlrev_b32", V(39), 1, v_l31)
    for i in range(3):
        s_un = tB[5]
        p.s("mul_i32", s_un, s_wave, 3); p.s("add_u32", s_un, s_un, i)
        p.s("lshr_b32", tB[0], s_un, 2)
        p.s("mul_i32", tB[1], s_phi, 3); p.s("add_u32", tB[1], tB[1], tB[0])
        p.s("lshr_b32", tB[2], s_un, 1); p.s("and_b32", tB[2], tB[2], 1)
        p.s("and_b32", tB[3], s_un, 1)
        p.s("lshl_b32", tB[4], s_tau, 1); p.s("add_u32", tB[4], tB[4], tB[2]); p.s("mul_i32", tB[4], tB[4], 44)
        p.s("lshl_b32", tB[0], tB[1], 1); p.s("add_u32", tB[4], tB[4], tB[0]); p.s("add_u32", tB[4], tB[4], tB[3]); p.s("lshl_b32", tB[4], tB[4], 10)
        p.sel(s_ub[i], "lt_u32", tB[1], 22, tB[4], WS_SIZE)
        p.s("lshr_b32", tB[0], s_un, 1); p.s("lshl_b32", tB[0], tB[0], 12); p.s("lshl_b32", tB[3], tB[3], 11); p.s("add_u32", s_ur[i], tB[0], tB[3])
        p.s("add_u32", tB[0], s_ub[i], WS_Z1F)
        p.bload("buffer_load_dwordx4", z1f[i], voff16, SWS, tB[0], flags="sc1", xr=["%o_ok"])
        p.s("lshl_b32", tB[1], s_tau, 6); p.s("lshl_b32", tB[2], tB[2], 5); p.s("add_u32", tB[1], tB[1], tB[2]); p.s("lshl_b32", tB[1], tB[1], 1)
        p.bload("buffer_load_ushort", bia[i], V(39), SBS, tB[1])
    p.barrier(xr=srd_[7] + srd_[6] + srd_[5], xw=["%b2free"], lazy=False)
    a_w = V(42); p.s("mul_i32", tB[0], s_wave, 24576); p.v("add_u32", a_w, tB[0], voff16)
    wt = []
    for ti in range(6):
        for qd in range(4):
            tk = f"%b2w{ti}{qd}"; wt.append(tk)
            p.ds_write("ds_write_b128", a_w, A(128 + 16 * ti + 4 * qd, 4), offset=ti * 4096 + qd * 1024, xr=["%b2free"], xw=[tk])
    p.barrier(xr=wt, xw=["%b2rdy"], lazy=False)
    utoks = []; b2rd = []
    v_c1b = V(51); p.v("mov_b32", v_c1b, C1)
    for i in range(3):
        a_r = V(43 + i); p.v("add_u32", a_r, s_ur[i], voff16)
        part = [V(128 + 32 * i + 8 * w, 8) for w in range(4)]
        a_r2 = [V(47), V(48), V(49)][i]; p.v("add_u32", a_r2, 49152, a_r)
        for w in range(4):
            for q in range(2):
                tk = tok()
                ii = p.ds_read("ds_read_b128", part[w][4 * q:4 * q + 4], a_r if w < 2 else a_r2, offset=(w % 2) * 24576 + q * 1024, xr=["%b2rdy"]); ii.writes.append(tk); b2rd.append(tk)
        g = part[0]
        p.v("lshlrev_b32", bia[i], 16, bia[i])
        for r in range(8):
            p.v("add_f32", g[r], g[r], part[1][r]); p.v("add_f32", part[2][r], part[2][r], part[3][r]); p.v("add_f32", g[r], g[r], part[2][r])
        for q in range(4):
            a, b = g[2 * q], g[2 * q + 1]; pk = part[1][q]; lo, hi = part[2][2 * q], part[2][2 * q + 1]
            e0, e1 = part[1][4 + q], part[3][4 + q]
            p.v("cvt_pk_bf16_f32", pk, a, b)
            p.v("lshlrev_b32", a, 16, pk); p.v("and_b32", b, 0xffff0000, pk)
            p.v("add_f32", a, a, bia[i]); p.v("add_f32", b, b, bia[i])
            p.v("cvt_pk_bf16_f32", pk, a, b)
            p.v("lshlrev_b32", a, 16, pk); p.v("and_b32", b, 0xffff0000, pk)
            p.v("lshlrev_b32", lo, 16, z1f[i][q]); p.v("and_b32", hi, 0xffff0000, z1f[i][q])
            gelu_ops(p, lo, e0, v_c1b); gelu_ops(p, hi, e1, v_c1b)
            p.v("cvt_pk_bf16_f32", pk, lo, hi); p.v("lshlrev_b32", lo, 16, pk); p.v("and_b32", hi, 0xffff0000, pk)
            p.v("mul_f32", a, a, lo); p.v("mul_f32", b, b, hi)
            p.v("cvt_pk_bf16_f32", part[3][q], a, b)
        so = tB[i]
        p.s("add_u32", so, s_ub[i], WS_U)
        ii = p.bstore("buffer_store_dwordx4", part[3][0:4], voff16, SWS, so, flags="sc1", xw=[f"%stu{i}"]); utoks.append(f"%stu{i}"); ii.asap = True; ii.prio = 500000
    if OPT.get("split"): p.flush(verbose=True); stamp(p, "b2 done")

    CACC = lambda tn, u: A(16 * (2 * tn + u), 16)
    GACC = lambda tn, u: A(64 + 16 * (2 * tn + u), 16)
    p.barrier(xr=b2rd, xw=["%b2done"], lazy=False)
    bpool = Pool2([V(96 + 4 * i, 4) for i in range(8)] + [V(224 + 4 * i, 4) for i in range(8)] + [V(128 + 4 * i, 4) for i in range(8)]); apool = Pool(V(64), 8, 4)
    dma_pair(8, [])
    for gk in range(75):
        if gk % 2 == 0 and gk + NSC - 2 < 76: dma_pair(gk + NSC - 2, [])
        if gk == OPT.get("upub", 8):
            p.barrier(xr=utoks, xw=["%u_pub"], lazy=False)
            k.arrive(PH_U, s_xcd, s_jj, ["%u_pub"], s_f[1], S(94))
        if gk == 30: b3_setup()
        if gk == OPT.get("upoll", 44):
            chk["u"] = k.poll("u", PH_U, s_xcd, V(30), S(95), [wtok[gk][1]])
        if gk == OPT.get("upoll", 44) + 8:
            p.barrier(xr=[chk["u"]], xw=["%u_ok"], lazy=False)
        if f"c{gk}" in CUTS: p.flush(verbose=True); stamp(p, f"c{gk}")
        wrdc[gk] = []
        isC = gk < 64; ks = gk if isC else gk - 64
        so = s_o if isC else s_u
        bf = []
        for u in range(2):
            r = bpool.next(); p.bload("buffer_load_dwordx4", r, voff16, SWS, so[u], offset=(ks % 4) * 1024, flags="sc1", xr=["%o_ok" if isC else "%u_ok"]); bf.append(r)
        if ks % 4 == 3:
            for u in range(2): p.s("add_u32", so[u], so[u], 4096)
        for tn in range(2):
            r = apool.next()
            for i2 in range(2):
                tk = tok()
                i = p.ds_read("ds_read_b64_tr_b16", r[2 * i2:2 * i2 + 2], (a_a if gk % NSC < 8 else a_b2)[tn], offset=(gk % NSC if gk % NSC < 8 else gk % NSC - 8) * 2048 + i2 * 512, xr=wtok[gk]); i.writes.append(tk); wrdc[gk].append(tk)
            for u in range(2):
                acc = (CACC if isC else GACC)(tn, u)
                mi = p.mfma(acc, r, bf[u], acc if ks else 0, pace=OPT.get("pace_c", 32))
        if gk in (0, 32, 63, 74):
            mi.writes.append(f"%ck{gk}"); mark(f"ck{gk}", f"%ck{gk}")
    if OPT.get("split"): p.flush(verbose=True); stamp(p, "C+B3 main done")
    xv = V(8, 8)
    for kk in range(2): p.bload("buffer_load_dwordx4", xv[4 * kk:4 * kk + 4], vo, SX2, s_xo, offset=32 * kk)
    a_w = V(17); p.s("lshl_b32", tC[2], s_wave, 14); p.v("add_u32", a_w, tC[2], voff16)
    a_r = [V(18), V(19)]
    p.s("lshl_b32", tC[3], s_wave, 12); p.v("add_u32", a_r[0], tC[3], voff16); p.v("add_u32", a_r[1], 98304, a_r[0])
    a_w2 = V(25); p.v("add_u32", a_w2, 98304, a_w)
    res = []
    for gi in range(2):
        wt = []
        if gi == 1: p.barrier(xr=[t for gk in range(66, 75) for t in wrdc[gk]], xw=["%cfree"], lazy=False)
        for ti in range(4):
            for qd in range(4):
                tk = f"%cw{gi}{ti}{qd}"; wt.append(tk)
                p.ds_write("ds_write_b128", a_w if gi == 0 else a_w2, A(64 * gi + 16 * ti + 4 * qd, 4), offset=ti * 4096 + qd * 1024, xr=["%b2done"] if gi == 0 else ["%cfree"], xw=[tk])
        p.barrier(xr=wt, xw=[f"%crdy{gi}"], lazy=False)
        part = [V(96, 16), V(112, 16), V(128, 16), V(144, 16)] if gi == 1 else [V(26, 4), None, None, None]
        if gi == 0:
            part = [V(32 + 0, 0 + 4)]
            part = [V(160, 16), V(176, 16), V(192, 16), V(208, 16)]
        for w in range(4):
            for q in range(4):
                p.ds_read("ds_read_b128", part[w][4 * q:4 * q + 4], a_r[gi], offset=w * 16384 + q * 1024, xr=[f"%crdy{gi}"])
        for r in range(16):
            p.v("add_f32", part[0][r], part[0][r], part[1][r]); p.v("add_f32", part[2][r], part[2][r], part[3][r]); p.v("add_f32", part[0][r], part[0][r], part[2][r])
        res.append(part)
    sv, gv = res[0][0], res[1][0]
    tp = res[1][1]; tq = res[1][2]; outp = V(64, 8)
    for q in range(8):
        s0, s1, g0, g1 = sv[2 * q], sv[2 * q + 1], gv[2 * q], gv[2 * q + 1]
        pk, e0, e1 = tp[q], tq[2 * q], tq[2 * q + 1]
        p.v("cvt_pk_bf16_f32", pk, g0, g1); p.v("lshlrev_b32", g0, 16, pk); p.v("and_b32", g1, 0xffff0000, pk)
        p.v("mul_f32", e0, -LOG2E, g0); p.v("mul_f32", e1, -LOG2E, g1)
        p.v("exp_f32", e0, e0); p.v("exp_f32", e1, e1)
        p.v("add_f32", e0, 1.0, e0); p.v("add_f32", e1, 1.0, e1)
        p.v("rcp_f32", e0, e0); p.v("rcp_f32", e1, e1)
        p.v("mul_f32", g0, g0, e0); p.v("mul_f32", g1, g1, e1)
        p.v("cvt_pk_bf16_f32", pk, g0, g1); p.v("lshlrev_b32", g0, 16, pk); p.v("and_b32", g1, 0xffff0000, pk)
        p.v("cvt_pk_bf16_f32", pk, s0, s1); p.v("lshlrev_b32", s0, 16, pk); p.v("and_b32", s1, 0xffff0000, pk)
        p.v("mul_f32", s0, s0, g0); p.v("mul_f32", s1, s1, g1)
        p.v("cvt_pk_bf16_f32", pk, s0, s1); p.v("lshlrev_b32", s0, 16, pk); p.v("and_b32", s1, 0xffff0000, pk)
        p.v("lshlrev_b32", e0, 16, xv[q]); p.v("and_b32", e1, 0xffff0000, xv[q])
        p.v("add_f32", s0, s0, e0); p.v("add_f32", s1, s1, e1)
        p.v("cvt_pk_bf16_f32", outp[q], s0, s1)
    for kk in range(2): p.bstore("buffer_store_dwordx4", outp[4 * kk:4 * kk + 4], vo, SOUT, s_xo, offset=32 * kk)
    p.flush(verbose=True); stamp(p, "end"); stamp_dump(p, SWS, 1)
    p.raw("s_endpgm"); p.flush(schedule=False)
    for n, nm in enumerate(rares):
        p.label(nm)
        p.raw(f"s_call_b64 {s_ret}, L_rescale{(n + 1) % 2}", kind="branch")
        p.raw(f"s_branch {nm}_ret", kind="branch")
        p.flush(schedule=False)
    for par in range(2):
        p.label(f"L_rescale{par}")
        p.out += rare(par).out
    k.emit_slow()
    p.label("L_end")
    p.raw("s_endpgm"); p.flush(schedule=False)
    return p
```

```python
import sys
sys.path.insert(0, "gen")
from common import *
import kf
NAME = "recurrent_scan__sliding_block_cached__mixer_gmlp__prompt_kernel"
HEADER = open("recurrent_scan__sliding_block_cached__mixer_gmlp__prompt.s.ref").read().split("; Override launch geometry")[0]
for a in sys.argv[1:]:
    if "=" in a:
        k_, v_ = a.split("="); OPT[k_] = v_ if not v_.isdigit() else int(v_)
if "stamps" in sys.argv: STAMPS["on"] = True
p = kf.gen()
s = HEADER + f"; @launch grid=(256,1,1) block=(256,1,1) lds={kf.LDS_BYTES}\n" + '.amdgcn_target "amdgcn-amd-amdhsa--gfx950"\n'
s += kernel_wrap(NAME, render(finalize(p.out)))
s += '.section .rodata,"a"\n.p2align 6\n' + kd(NAME)
path = OPT.get("out", "f.s")
open(path, "w").write(s); print("wrote", path, len(s), STAMPS.get("names"))
```
